```python
import torch

def _softmax(x, axis=-1):
    return torch.softmax(x, dim=axis)
def _gelu(x):
    return torch.nn.functional.gelu(x, approximate="tanh")
def _silu(x):
    return torch.nn.functional.silu(x)
def _sigmoid(x):
    return torch.sigmoid(x)
def _layernorm(x, axis=-1, eps=1e-5):
    m = x.mean(dim=axis, keepdim=True)
    v = x.var(dim=axis, keepdim=True, unbiased=False)
    return (x - m) / torch.sqrt(v + eps)
def _scatter_add(tgt, idx, src, axis=0):
    return tgt.clone().index_add_(axis, idx, src)
def _segment_sum(src, seg, n):
    out = torch.zeros((n,) + src.shape[1:], dtype=src.dtype)
    return out.index_add_(0, seg, src)
def _pad(x, pw):
    flat = tuple(v for pair in reversed(pw) for v in pair)
    return torch.nn.functional.pad(x, flat)

kernel_name = 'parallel_sum__sliding_block__mixer_token_mlp__prompt'

def setup_inputs():

    _w = (lambda a: (lambda t: t.to(torch.bfloat16) if t.is_floating_point() else t)(torch.as_tensor(a)))
    def _A_setup():
        B, S, D = 1, 2048, 1024
        return {
            "x": _w((lambda *s: torch.randn(*s, dtype=torch.bfloat16) * 0.05)(B, S, D)),
            "wqkv": _w((lambda *s: torch.randn(*s, dtype=torch.bfloat16) * 0.05)(D, 3 * D)),
            "wo": _w((lambda *s: torch.randn(*s, dtype=torch.bfloat16) * 0.05)(D, D)),
        }
    _A_in = _A_setup()

    def _B_setup():
        B, S, D, F = 1, 2048, 1024, 3584
        return {
            "x": _w((lambda *s: torch.randn(*s, dtype=torch.bfloat16) * 0.05)(B, S, D)),
            "w1": _w((lambda *s: torch.randn(*s, dtype=torch.bfloat16) * 3.2)(S, F) * (S ** -0.5)),
            "b1": _w((lambda *s: torch.randn(*s, dtype=torch.bfloat16) * 3.2)(F) * 0.02),
            "w2": _w((lambda *s: torch.randn(*s, dtype=torch.bfloat16) * 0.4)(F, S) * (F ** -0.5)),
            "b2": _w((lambda *s: torch.randn(*s, dtype=torch.bfloat16) * 0.4)(S) * 0.02),
        }
    _B_in = _B_setup()

    return {
        "A_x": _A_in["x"],
        "A_wqkv": _A_in["wqkv"],
        "A_wo": _A_in["wo"],
        "B_x": _B_in["x"],
        "B_w1": _B_in["w1"],
        "B_b1": _B_in["b1"],
        "B_w2": _B_in["w2"],
        "B_b2": _B_in["b2"],
    }

def reference(A_x, A_wqkv, A_wo, B_x, B_w1, B_b1, B_w2, B_b2):
    def _A_ref(x, wqkv, wo):
        B, S, D = x.shape
        H = 32; Dh = D // H; W = 256
        qkv = (lambda x, *d: x.permute(*d))((x @ wqkv).reshape(B, S, 3, H, Dh), 2, 0, 3, 1, 4)
        q, k, v = qkv[0], qkv[1], qkv[2]
        scores = torch.einsum("bhqd,bhkd->bhqk", q, k) * (Dh ** -0.5)
        idx = torch.arange(S)
        mask = (idx[:, None] - idx[None, :] >= 0) & (idx[:, None] - idx[None, :] < W)
        scores = torch.where(mask[None, None], scores, -1e9)
        p = _softmax(scores, axis=-1)
        o = torch.einsum("bhqk,bhkd->bhqd", p, v)
        return (lambda x, *d: x.permute(*d))(o, 0, 2, 1, 3).reshape(B, S, D) @ wo

    def _B_ref(x, w1, b1, w2, b2):
        B, S, D = x.shape
        h = _layernorm(x, axis=-1)
        u = torch.einsum("bsd,sf->bdf", h, w1) + b1
        u = _gelu(u)
        y = torch.einsum("bdf,fs->bds", u, w2) + b2
        return (lambda x, *d: x.permute(*d))(y, 0, 2, 1)

    x = A_x
    xn = _layernorm(x, axis=-1)
    return x + _A_ref(xn, A_wqkv, A_wo) + _B_ref(xn, B_w1, B_b1, B_w2, B_b2)
```

```python
import sys, struct

NAME = "parallel_sum__sliding_block__mixer_token_mlp__prompt"
MB = 1 << 20
WS_XN, WS_HT, WS_QKV, WS_U, WS_O = 0, 4 * MB, 8 * MB, 20 * MB, 28 * MB
SZ_XN, SZ_HT, SZ_QKV, SZ_U, SZ_O = 4 * MB, 4 * MB, 12 * MB, 8 * 224 * 4096, 4 * MB
A_X, A_WQKV, A_WO, B_X, B_W1, B_B1, B_W2, B_B2, D_OUT, D_DBG, D_WS = [8 * i for i in range(11)]


def f2u(x):
    return struct.unpack("<I", struct.pack("<f", x))[0]


class Asm:
    def __init__(self):
        self.L = []

    def __call__(self, s):
        self.L.append("    " + s)

    def label(self, s):
        self.L.append(s + ":")

    def raw(self, s):
        self.L.append(s)

    def text(self):
        return "\n".join(self.L) + "\n"


def vr(b, n):
    return f"v[{b}:{b + n - 1}]"


def sr(b, n):
    return f"s[{b}:{b + n - 1}]"


def kernel_begin(a, name):
    a.raw(".text")
    a.raw(f".globl {name}")
    a.raw(".p2align 8")
    a.raw(f".type {name},@function")
    a.label(name)


def kernel_desc(a, name, vgpr, sgpr=102):
    acc = (vgpr + 3) // 4 * 4
    a.raw('.section .rodata,"a"')
    a.raw(".p2align 6")
    a.raw(f".amdhsa_kernel {name}")
    a.raw(f"  .amdhsa_next_free_vgpr {vgpr}")
    a.raw(f"  .amdhsa_next_free_sgpr {sgpr}")
    a.raw(f"  .amdhsa_accum_offset {acc}")
    a.raw("  .amdhsa_group_segment_fixed_size 0")
    a.raw("  .amdhsa_kernarg_size 88")
    a.raw("  .amdhsa_user_sgpr_count 2")
    a.raw("  .amdhsa_user_sgpr_kernarg_segment_ptr 1")
    a.raw("  .amdhsa_system_sgpr_workgroup_id_x 1")
    a.raw("  .amdhsa_float_denorm_mode_32 3")
    a.raw(".end_amdhsa_kernel")


def make_srd(a, d, base, off, size):
    if off:
        a(f"s_add_u32 s{d}, s{base}, {off:#x}")
        a(f"s_addc_u32 s{d + 1}, s{base + 1}, 0")
    else:
        a(f"s_mov_b32 s{d}, s{base}")
        a(f"s_mov_b32 s{d + 1}, s{base + 1}")
    a(f"s_mov_b32 s{d + 2}, {size:#x}")
    a(f"s_mov_b32 s{d + 3}, 0x00020000")


LN_RSA = 2048 + 16
LN_RSB = 2048 + 64
LN_OFFB = 8 * LN_RSA
LN_LDS = LN_OFFB + 8 * LN_RSB


def wave_reduce(a, regs):
    steps = ["row_shr:1 row_mask:0xf bank_mask:0xf bound_ctrl:0",
             "row_shr:2 row_mask:0xf bank_mask:0xf bound_ctrl:0",
             "row_shr:4 row_mask:0xf bank_mask:0xf bound_ctrl:0",
             "row_shr:8 row_mask:0xf bank_mask:0xf bound_ctrl:0",
             "row_bcast:15 row_mask:0xa bank_mask:0xf",
             "row_bcast:31 row_mask:0xc bank_mask:0xf"]
    for st in steps:
        a("s_nop 1")
        for r in regs:
            a(f"v_add_f32_dpp v{r}, v{r}, v{r} {st}")


def round_bf(a, r, tmp=None):
    a(f"v_cvt_pk_bf16_f32 v{r}, v{r}, v{r}")
    a(f"v_lshlrev_b32 v{r}, 16, v{r}")


def gen_ln(a):
    name = "ln_kernel"
    kernel_begin(a, name)
    a("s_cmp_ge_u32 s2, 256")
    a("s_cbranch_scc1 ln_done")
    a(f"s_load_dwordx2 s[4:5], s[0:1], {A_X}")
    a(f"s_load_dwordx2 s[6:7], s[0:1], {D_WS}")
    a("v_and_b32 v1, 63, v0")
    a("v_lshrrev_b32 v2, 6, v0")
    a("v_lshlrev_b32 v3, 4, v1")
    a("v_readfirstlane_b32 s3, v2")
    a("s_lshl_b32 s20, s2, 3")
    a("s_add_u32 s20, s20, s3")
    a("s_lshl_b32 s21, s20, 11")
    a("s_waitcnt lgkmcnt(0)")
    make_srd(a, 8, 4, 0, 4 * MB)
    make_srd(a, 12, 6, WS_XN, SZ_XN)
    make_srd(a, 16, 6, WS_HT, SZ_HT)
    a("buffer_load_dwordx4 v[8:11], v3, s[8:11], s21 offen")
    a("buffer_load_dwordx4 v[12:15], v3, s[8:11], s21 offen offset:1024")
    a("s_mov_b32 s22, 0xffff0000")
    a(f"s_mov_b32 s23, {f2u(1.0 / 1024):#x}")
    a(f"s_mov_b32 s24, {f2u(1e-5):#x}")
    X = 16
    a("s_waitcnt vmcnt(0)")
    for i in range(8):
        a(f"v_lshlrev_b32 v{X + 2 * i}, 16, v{8 + i}")
        a(f"v_and_b32 v{X + 2 * i + 1}, s22, v{8 + i}")
    a(f"v_add_f32 v4, v{X}, v{X + 1}")
    a(f"v_add_f32 v5, v{X + 2}, v{X + 3}")
    for i in range(4, 16, 2):
        a(f"v_add_f32 v4, v4, v{X + i}")
        a(f"v_add_f32 v5, v5, v{X + i + 1}")
    a("v_add_f32 v4, v4, v5")
    wave_reduce(a, [4])
    a("s_nop 1")
    a("v_readlane_b32 s25, v4, 63")
    a("s_nop 1")
    a("v_mov_b32 v6, s23")
    a("v_mul_f32 v6, s25, v6")
    D = 32
    for i in range(16):
        a(f"v_sub_f32 v{D + i}, v{X + i}, v6")
    a(f"v_mul_f32 v4, v{D}, v{D}")
    a(f"v_mul_f32 v5, v{D + 1}, v{D + 1}")
    for i in range(2, 16, 2):
        a(f"v_fmac_f32 v4, v{D + i}, v{D + i}")
        a(f"v_fmac_f32 v5, v{D + i + 1}, v{D + i + 1}")
    a("v_add_f32 v4, v4, v5")
    wave_reduce(a, [4])
    a("s_nop 1")
    a("v_readlane_b32 s25, v4, 63")
    round_bf(a, 6)
    a("v_mov_b32 v7, s23")
    a("v_mul_f32 v7, s25, v7")

    def finish(src, dst_pk, mean, var):
        round_bf(a, var)
        a(f"v_add_f32 v{var}, s24, v{var}")
        round_bf(a, var)
        a(f"v_sqrt_f32 v{var}, v{var}")
        a("s_nop 0")
        round_bf(a, var)
        a(f"v_rcp_f32 v48, v{var}")
        for i in range(16):
            a(f"v_sub_f32 v{D + i}, v{src + i}, v{mean}")
        for i in range(8):
            a(f"v_cvt_pk_bf16_f32 v{dst_pk + i}, v{D + 2 * i}, v{D + 2 * i + 1}")
        for i in range(8):
            a(f"v_lshlrev_b32 v{D + 2 * i}, 16, v{dst_pk + i}")
            a(f"v_and_b32 v{D + 2 * i + 1}, s22, v{dst_pk + i}")
        for i in range(16):
            a(f"v_mul_f32 v{src + i}, v{D + i}, v48")
        for i in range(16):
            a(f"v_fma_f32 v{D + i}, -v{src + i}, v{var}, v{D + i}")
        for i in range(16):
            a(f"v_fmac_f32 v{src + i}, v{D + i}, v48")
        for i in range(8):
            a(f"v_cvt_pk_bf16_f32 v{dst_pk + i}, v{src + 2 * i}, v{src + 2 * i + 1}")
        for i in range(8):
            a(f"v_lshlrev_b32 v{src + 2 * i}, 16, v{dst_pk + i}")
            a(f"v_and_b32 v{src + 2 * i + 1}, s22, v{dst_pk + i}")

    finish(X, 8, 6, 7)
    a(f"s_mul_i32 s26, s3, {LN_RSA}")
    a("v_add_u32 v50, s26, v3")
    a("ds_write_b128 v50, v[8:11]")
    a("ds_write_b128 v50, v[12:15] offset:1024")
    a(f"v_add_f32 v4, v{X}, v{X + 1}")
    a(f"v_mul_f32 v5, v{X}, v{X}")
    a(f"v_fmac_f32 v5, v{X + 1}, v{X + 1}")
    for i in range(2, 16):
        a(f"v_add_f32 v4, v4, v{X + i}")
        a(f"v_fmac_f32 v5, v{X + i}, v{X + i}")
    wave_reduce(a, [4, 5])
    a("s_nop 1")
    a("v_readlane_b32 s25, v4, 63")
    a("v_readlane_b32 s27, v5, 63")
    a("v_mov_b32 v6, s23")
    a("v_mov_b32 v7, s23")
    a("v_mul_f32 v6, s25, v6")
    a("v_mul_f32 v7, s27, v7")
    a("v_fma_f32 v7, -v6, v6, v7")
    a("v_max_f32 v7, 0, v7")
    round_bf(a, 6)
    finish(X, 52, 6, 7)
    a(f"s_mul_i32 s26, s3, {LN_RSB}")
    a(f"s_add_u32 s26, s26, {LN_OFFB}")
    a("v_add_u32 v50, s26, v3")
    a("ds_write_b128 v50, v[52:55]")
    a("ds_write_b128 v50, v[56:59] offset:1024")
    a("v_and_b32 v4, 7, v0")
    a("v_lshrrev_b32 v5, 3, v0")
    a(f"v_mul_u32_u24 v6, {LN_RSA}, v4")
    a("v_lshl_add_u32 v6, v5, 4, v6")
    a("v_lshrrev_b32 v7, 1, v5")
    a("v_lshlrev_b32 v7, 13, v7")
    a("v_and_b32 v5, 1, v5")
    a("v_lshl_add_u32 v7, v5, 9, v7")
    a("v_lshl_add_u32 v7, v4, 4, v7")
    a("s_lshr_b32 s26, s2, 5")
    a("s_lshl_b32 s26, s26, 19")
    a("s_lshr_b32 s27, s2, 2")
    a("s_and_b32 s27, s27, 7")
    a("s_lshl_b32 s27, s27, 10")
    a("s_add_u32 s26, s26, s27")
    a("s_and_b32 s27, s2, 3")
    a("s_lshl_b32 s27, s27, 7")
    a("s_add_u32 s26, s26, s27")
    a("s_add_u32 s27, s26, 0x40000")
    a("v_bfe_u32 v4, v1, 2, 2")
    a(f"v_mul_u32_u24 v4, {LN_RSB}, v4")
    a("v_lshrrev_b32 v5, 4, v1")
    a("v_lshl_add_u32 v4, v5, 5, v4")
    a("v_and_b32 v5, 3, v1")
    a("v_lshl_add_u32 v4, v5, 3, v4")
    a("s_lshl_b32 s28, s3, 7")
    a(f"s_add_u32 s28, s28, {LN_OFFB}")
    a("v_add_u32 v4, s28, v4")
    a("v_and_b32 v5, 31, v1")
    a("v_lshlrev_b32 v5, 4, v5")
    a("v_lshrrev_b32 v49, 5, v1")
    a("v_lshl_add_u32 v5, v49, 10, v5")
    a("s_lshr_b32 s28, s3, 1")
    a("s_lshl_b32 s28, s28, 19")
    a("s_lshr_b32 s29, s2, 1")
    a("s_lshl_b32 s29, s29, 12")
    a("s_add_u32 s28, s28, s29")
    a("s_and_b32 s29, s3, 1")
    a("s_lshl_b32 s29, s29, 11")
    a("s_add_u32 s28, s28, s29")
    a("s_and_b32 s29, s2, 1")
    a("s_lshl_b32 s29, s29, 9")
    a("s_add_u32 s28, s28, s29")
    a("s_add_u32 s29, s28, 0x200000")
    a("s_waitcnt lgkmcnt(0)")
    a("s_barrier")
    a("ds_read_b128 v[8:11], v6")
    a("ds_read_b128 v[12:15], v6 offset:1024")
    a("ds_read_b64_tr_b16 v[16:17], v4")
    a(f"ds_read_b64_tr_b16 v[18:19], v4 offset:{4 * LN_RSB}")
    a("ds_read_b64_tr_b16 v[20:21], v4 offset:1024")
    a(f"ds_read_b64_tr_b16 v[22:23], v4 offset:{4 * LN_RSB + 1024}")
    a("s_waitcnt lgkmcnt(5)")
    a("buffer_store_dwordx4 v[8:11], v7, s[12:15], s26 offen")
    a("s_waitcnt lgkmcnt(4)")
    a("buffer_store_dwordx4 v[12:15], v7, s[12:15], s27 offen")
    a("s_waitcnt lgkmcnt(2)")
    a("buffer_store_dwordx4 v[16:19], v5, s[16:19], s28 offen")
    a("s_waitcnt lgkmcnt(0)")
    a("buffer_store_dwordx4 v[20:23], v5, s[16:19], s29 offen")
    a.label("ln_done")
    a("s_endpgm")
    kernel_desc(a, name, 64, 40)


class Consumer:
    def __init__(self, a, KS, PD, NSET, nW, nX, wreg, xreg, acc, rpg=2):
        self.a, self.KS, self.PD, self.NSET = a, KS, PD, NSET
        self.nW, self.nX = nW, nX
        self.wreg, self.xreg, self.acc = wreg, xreg, acc
        self.q = []
        self.rpg = rpg

    def reads(self, form, ks, st):
        out = []
        seen = set()
        for (ai, wi, xi, wA) in form["mfma"]:
            if ("W", wi) not in seen:
                seen.add(("W", wi))
                for r in range(2):
                    ad, off = form["wread"](wi, ks, r)
                    out.append((("W", wi, st), f"ds_read_b64_tr_b16 {vr(self.wreg(st, wi) + 2 * r, 2)}, v{ad} offset:{off}"))
            if ("X", xi) not in seen:
                seen.add(("X", xi))
                ad, off = form["xread"](xi, ks)
                out.append((("X", xi, st), f"ds_read_b128 {vr(self.xreg(st, xi), 4)}, v{ad} offset:{off}"))
        return out

    def need(self, tags):
        pos = -1
        for i, t in enumerate(self.q):
            if t in tags:
                pos = i
        if pos >= 0:
            n = len(self.q) - 1 - pos
            self.a(f"s_waitcnt lgkmcnt({min(n, 15)})")
            if n > 15:
                pos = len(self.q) - 1 - 15
            self.q = self.q[pos + 1:]

    def slot(self, sigma, mform, rform, barrier, extra=(), zero_c=False, tight=False):
        a = self.a
        rd = self.reads(rform, sigma % self.KS, sigma % self.NSET) if rform else []
        extra = list(extra)
        if mform is None:
            if barrier:
                if tight:
                    a("s_waitcnt lgkmcnt(0)")
                    self.q = []
                a("s_barrier")
            for t, s in rd:
                a(s)
                self.q.append(t)
            for s in extra:
                a(s)
            return
        st = (sigma - self.PD) % self.NSET
        ml = mform["mfma"]
        for i, (ai, wi, xi, wA) in enumerate(ml):
            self.need({("W", wi, st), ("X", xi, st)})
            w, x = vr(self.wreg(st, wi), 4), vr(self.xreg(st, xi), 4)
            A, B = (w, x) if wA else (x, w)
            c = vr(self.acc(ai), 16)
            a(f"v_mfma_f32_32x32x16_bf16 {c}, {A}, {B}, {'0' if zero_c else c}")
            if i == 0 and barrier:
                if tight:
                    a("s_waitcnt lgkmcnt(0)")
                    self.q = []
                a("s_barrier")
            last = i == len(ml) - 1
            n = len(rd) if last else self.rpg
            if rd:
                for t, s in rd[:n]:
                    a(s)
                    self.q.append(t)
                rd = rd[n:]
            elif extra:
                n = len(extra) if last else 3
                for s in extra[:n]:
                    a(s)
                extra = extra[n:]
        for s in extra:
            a(s)

    def prime(self, rform):
        self.q = []
        for s in range(self.KS):
            for t, _ in self.reads(rform, s, s % self.NSET):
                self.q.append(t)


def base_update(bases, sB, sD, NS, STAGE):
    out = [f"s_add_u32 s{sB}, s{sB}, 1",
           f"s_cmp_eq_u32 s{sB}, {NS}",
           f"s_cselect_b32 s{sD}, {(-(NS - 1) * STAGE) & 0xffffffff:#x}, s{sD + 1}",
           f"s_cselect_b32 s{sB}, 0, s{sB}"]
    for b in bases:
        out.append(f"v_add_u32 v{b}, s{sD}, v{b}")
    return out


def consumer_run(a, c, forms, bases, sB, sD, sCnt, NS, STAGE, tag, zero_c, tight=False):
    KS, PD = c.KS, c.PD
    a(f"s_mov_b32 s{sB}, 0")
    a(f"s_mov_b32 s{sD + 1}, {STAGE}")
    upd = base_update(bases, sB, sD, NS, STAGE)
    prev = None
    for fi, (form, NK, sw) in enumerate(forms):
        for s in sw:
            a(s)
        if prev is not None:
            c.prime(prev)
        for s in range(KS):
            mf = (form if s >= PD else prev)
            c.slot(s, mf, form, s == 0, extra=upd if s == KS - 1 else (),
                   zero_c=(zero_c and prev is None and s == PD), tight=tight)
        if NK > 1:
            a(f"s_mov_b32 s{sCnt}, {NK - 1}")
            a.label(f"{tag}_loop{fi}")
            c.prime(form)
            for s in range(KS):
                ex = []
                if s == KS - 1:
                    ex = upd + [f"s_sub_u32 s{sCnt}, s{sCnt}, 1", f"s_cmp_lg_u32 s{sCnt}, 0"]
                c.slot(s, form, form, s == 0, extra=ex, tight=tight)
            a(f"s_cbranch_scc1 {tag}_loop{fi}")
        prev = form
    c.prime(prev)
    for s in range(PD):
        c.slot(s, prev, None, False)


def producer_run(a, issue, P, NS, LAG, NK, sCnt, tag, switch=None):
    assert (NS - 1) * P <= 63
    for k in range(NS):
        issue()
    for j in range(LAG + 1):
        a(f"s_waitcnt vmcnt({(NS - 1 - j) * P})")
        a("s_barrier")
    segs = []
    if switch is None:
        segs = [(NK - NS, None)]
    else:
        kk, code = switch
        assert NS <= kk < NK
        segs = [(kk - NS, None), (NK - kk, code)]
    for si, (cnt, code) in enumerate(segs):
        if code:
            for s in code:
                a(s)
        if cnt <= 0:
            continue
        a(f"s_mov_b32 s{sCnt}, {cnt}")
        a.label(f"{tag}_ploop{si}")
        a(f"s_waitcnt vmcnt({(NS - 2 - LAG) * P})")
        a("s_barrier")
        issue()
        a(f"s_sub_u32 s{sCnt}, s{sCnt}, 1")
        a(f"s_cmp_lg_u32 s{sCnt}, 0")
        a(f"s_cbranch_scc1 {tag}_ploop{si}")
    for j in range(NK - NS + LAG + 1, NK):
        a(f"s_waitcnt vmcnt({(NK - 1 - j) * P})")
        a("s_barrier")


def w_lane_goff(a, dst, lane, ldw, t0, t1):
    a(f"v_lshrrev_b32 v{t0}, 3, v{lane}")
    a(f"s_mov_b32 s90, {ldw}")
    a(f"v_mul_lo_u32 v{dst}, v{t0}, s90")
    a(f"v_bfe_u32 v{t0}, v{lane}, 4, 1")
    a(f"v_lshlrev_b32 v{t0}, 2, v{t0}")
    a(f"v_and_b32 v{t1}, 7, v{lane}")
    a(f"v_xor_b32 v{t0}, v{t0}, v{t1}")
    a(f"v_lshl_add_u32 v{dst}, v{t0}, 4, v{dst}")


def w_lane_laddr(a, dst, lane, perm, t0, t1):
    a(f"v_bfe_u32 v{t0}, v{lane}, 2, 2")
    a(f"v_lshrrev_b32 v{t1}, 5, v{lane}")
    a(f"v_lshl_add_u32 v{t0}, v{t1}, {2 if perm else 3}, v{t0}")
    a(f"v_lshlrev_b32 v{dst}, 7, v{t0}")
    a(f"v_bfe_u32 v{t0}, v{lane}, 3, 1")
    a(f"v_lshl_add_u32 v{dst}, v{t0}, 6, v{dst}")
    a(f"v_bfe_u32 v{t0}, v{lane}, 4, 1")
    a(f"v_lshl_add_u32 v{dst}, v{t0}, 5, v{dst}")
    a(f"v_and_b32 v{t0}, 3, v{lane}")
    a(f"v_lshl_add_u32 v{dst}, v{t0}, 3, v{dst}")


def w_roff(ks, r, perm):
    return (16 * ks + (8 if perm else 4) * r) * 128


G1 = dict(BK=32, NS=5, LAG=1, WB=3 * 4096, XB=16384)
G2 = dict(BK=32, NS=6, LAG=1, WB=4 * 4096, XB=8192)
G12_LDS = max(G1["NS"] * (G1["WB"] + G1["XB"]), G2["NS"] * (G2["WB"] + G2["XB"]))
G12_GRID = 240


def gen_g12(a):
    name = "g12_kernel"
    kernel_begin(a, name)
    a(f"s_cmp_ge_u32 s2, {G12_GRID}")
    a("s_cbranch_scc1 g12_done")
    a(f"s_load_dwordx2 s[4:5], s[0:1], {A_WQKV}")
    a(f"s_load_dwordx4 s[8:11], s[0:1], {B_W1}")
    a(f"s_load_dwordx2 s[6:7], s[0:1], {D_WS}")
    a("v_and_b32 v1, 63, v0")
    a("v_lshrrev_b32 v2, 6, v0")
    a("s_and_b32 s30, s2, 7")
    a("v_readfirstlane_b32 s3, v2")
    a("s_lshr_b32 s31, s2, 3")
    a("s_waitcnt lgkmcnt(0)")
    a("s_cmp_ge_u32 s31, 14")
    a("s_cbranch_scc1 g1_entry")
    g = G2
    STAGE = g["WB"] + g["XB"]
    NK = 2048 // g["BK"]
    a("s_mul_i32 s32, s30, 14")
    a("s_add_u32 s32, s32, s31")
    a("s_cmp_ge_u32 s32, 56")
    a("s_cselect_b32 s33, 4, 0")
    a("s_cselect_b32 s34, 56, 0")
    a("s_sub_u32 s32, s32, s34")
    a("s_and_b32 s34, s32, 3")
    a("s_add_u32 s33, s33, s34")
    a("s_lshr_b32 s32, s32, 2")
    a("s_cmp_ge_u32 s3, 4")
    a("s_cbranch_scc1 g2_prod")
    make_srd(a, 12, 10, 0, 3584 * 2)
    make_srd(a, 16, 6, WS_U, SZ_U)
    a("s_and_b32 s35, s3, 1")
    a("s_lshr_b32 s36, s3, 1")
    ACC = 128
    a("v_lshrrev_b32 v2, 5, v1")
    a("v_lshlrev_b32 v2, 3, v2")
    a("s_lshl_b32 s37, s32, 9")
    a("s_lshl_b32 s38, s35, 8")
    a("s_add_u32 s37, s37, s38")
    for fb in range(4):
        for gg in range(4):
            a(f"buffer_load_dwordx2 {vr(8 + (fb * 4 + gg) * 2, 2)}, v2, s[12:15], s37 offen offset:{fb * 64 + gg * 16}")
    w_lane_laddr(a, 4, 1, False, 6, 7)
    a("s_lshl_b32 s38, s35, 13")
    a("v_add_u32 v4, s38, v4")
    a("v_xor_b32 v5, 64, v4")
    a("v_lshlrev_b32 v6, 4, v1")
    a("s_lshl_b32 s38, s36, 11")
    a(f"s_add_u32 s38, s38, {g['WB']}")
    a("v_add_u32 v6, s38, v6")
    a("s_mov_b32 s39, 0xffff0000")
    a("s_waitcnt vmcnt(0)")
    for fb in range(4):
        for gg in range(4):
            for j in range(2):
                src = 8 + (fb * 4 + gg) * 2 + j
                for xi in range(2):
                    d = ACC + (fb * 2 + xi) * 16 + gg * 4 + 2 * j
                    a(f"v_lshlrev_b32 v{d}, 16, v{src}")
                    a(f"v_and_b32 v{d + 1}, s39, v{src}")
    form = dict(
        mfma=[(wi * 2 + xi, wi, xi, True) for wi in range(4) for xi in range(2)],
        wread=lambda wi, ks, r: (4 + (wi & 1), (wi >> 1) * 4096 + w_roff(ks, r, False)),
        xread=lambda xi, ks: (6, ks * 4096 + xi * 1024),
    )
    c = Consumer(a, 2, 1, 2, 4, 2, lambda st, wi: 8 + (st * 4 + wi) * 4, lambda st, xi: 40 + (st * 2 + xi) * 4,
                 lambda ai: ACC + ai * 16)
    consumer_run(a, c, [(form, NK, [])], [4, 5, 6], 40, 42, 44, g["NS"], STAGE, "g2c", False)
    c1 = -2.0 * 1.4426950408889634 * 0.7978845608028654
    c2 = c1 * 0.044715
    a(f"s_mov_b32 s46, {f2u(c1):#x}")
    a(f"s_mov_b32 s47, {f2u(c1):#x}")
    a(f"s_mov_b32 s48, {f2u(c2):#x}")
    a(f"s_mov_b32 s49, {f2u(c2):#x}")
    a("s_mul_i32 s37, s33, 224")
    a("s_lshl_b32 s38, s32, 4")
    a("s_add_u32 s37, s37, s38")
    a("s_lshl_b32 s38, s35, 3")
    a("s_add_u32 s37, s37, s38")
    a("s_lshl_b32 s37, s37, 12")
    a("s_lshl_b32 s38, s36, 11")
    a("s_add_u32 s37, s37, s38")
    a("v_lshlrev_b32 v2, 4, v1")
    a("v_mov_b32 v4, s46")
    a("v_mov_b32 v5, s46")
    a("s_nop 7")
    a("s_nop 7")
    T = 8
    for fb in range(4):
        for xi in range(2):
            for t in range(2):
                b = ACC + (fb * 2 + xi) * 16 + t * 8
                tb = T + (((fb * 2 + xi) * 2 + t) & 1) * 24
                for p in range(4):
                    a(f"v_pk_mul_f32 {vr(tb + 2 * p, 2)}, {vr(b + 2 * p, 2)}, {vr(b + 2 * p, 2)}")
                for p in range(4):
                    a(f"v_pk_fma_f32 {vr(tb + 2 * p, 2)}, {vr(tb + 2 * p, 2)}, s[48:49], v[4:5]")
                for p in range(4):
                    a(f"v_pk_mul_f32 {vr(tb + 2 * p, 2)}, {vr(tb + 2 * p, 2)}, {vr(b + 2 * p, 2)}")
                for p in range(8):
                    a(f"v_exp_f32 v{tb + p}, v{tb + p}")
                for p in range(4):
                    a(f"v_pk_add_f32 {vr(tb + 2 * p, 2)}, {vr(tb + 2 * p, 2)}, 1.0 op_sel_hi:[1,0]")
                for p in range(8):
                    a(f"v_rcp_f32 v{tb + p}, v{tb + p}")
                for p in range(4):
                    a(f"v_pk_mul_f32 {vr(tb + 2 * p, 2)}, {vr(tb + 2 * p, 2)}, {vr(b + 2 * p, 2)}")
                for p in range(4):
                    a(f"v_cvt_pk_bf16_f32 v{tb + 8 + p}, v{tb + 2 * p}, v{tb + 2 * p + 1}")
                a(f"s_add_u32 s38, s37, {(fb * 2 + t) * 4096 + xi * 1024}")
                a(f"buffer_store_dwordx4 {vr(tb + 8, 4)}, v2, s[16:19], s38 offen")
    a("s_endpgm")
    a.label("g2_prod")
    a("s_sub_u32 s3, s3, 4")
    make_srd(a, 12, 8, 0, 2048 * 3584 * 2)
    make_srd(a, 16, 6, WS_HT, SZ_HT)
    ldw = 3584 * 2
    w_lane_goff(a, 4, 1, ldw, 2, 3)
    for cb in range(1, 4):
        a(f"v_add_u32 v{4 + cb}, {cb * 128}, v4")
    a("v_lshlrev_b32 v8, 4, v1")
    a(f"s_mul_i32 s35, s3, {8 * ldw}")
    a("s_lshl_b32 s36, s32, 9")
    a("s_add_u32 s35, s35, s36")
    a("s_lshl_b32 s36, s33, 19")
    a("s_lshl_b32 s37, s3, 11")
    a("s_add_u32 s36, s36, s37")
    a("s_lshl_b32 s38, s3, 10")
    a(f"s_add_u32 s39, s37, {g['WB']}")
    a("s_mov_b32 s40, 0")

    def issue2():
        for cb in range(4):
            if cb == 0:
                a("s_add_u32 m0, s40, s38")
            else:
                a("s_add_u32 m0, m0, 4096")
            a("s_nop 0")
            a(f"buffer_load_dwordx4 v{4 + cb}, s[12:15], s35 offen lds")
        a("s_add_u32 m0, s40, s39")
        a(f"s_add_u32 s35, s35, {g['BK'] * ldw}")
        a("buffer_load_dwordx4 v8, s[16:19], s36 offen lds")
        a("buffer_load_dwordx4 v8, s[16:19], s36 offen offset:1024 lds")
        a(f"s_add_u32 s36, s36, {g['XB']}")
        a(f"s_add_u32 s40, s40, {STAGE}")
        a(f"s_cmp_eq_u32 s40, {STAGE * g['NS']}")
        a("s_cselect_b32 s40, 0, s40")

    producer_run(a, issue2, 6, g["NS"], g["LAG"], NK, 44, "g2")
    a("s_endpgm")

    a.label("g1_entry")
    g = G1
    STAGE = g["WB"] + g["XB"]
    NK = 1024 // g["BK"]
    a("s_sub_u32 s31, s31, 14")
    a("s_and_b32 s32, s30, 3")
    a("s_lshl_b32 s32, s32, 2")
    a("s_and_b32 s33, s31, 3")
    a("s_add_u32 s32, s32, s33")
    a("s_lshr_b32 s33, s30, 2")
    a("s_lshl_b32 s33, s33, 2")
    a("s_lshr_b32 s34, s31, 2")
    a("s_add_u32 s33, s33, s34")
    a("s_cmp_ge_u32 s3, 4")
    a("s_cbranch_scc1 g1_prod")
    make_srd(a, 16, 6, WS_QKV, SZ_QKV)
    a("s_and_b32 s35, s3, 1")
    a("s_lshr_b32 s36, s3, 1")
    w_lane_laddr(a, 4, 1, False, 6, 7)
    a("s_lshl_b32 s38, s35, 6")
    a("v_xor_b32 v4, s38, v4")
    a("v_lshlrev_b32 v6, 4, v1")
    a("s_lshl_b32 s38, s36, 12")
    a(f"s_add_u32 s38, s38, {g['WB']}")
    a("v_add_u32 v6, s38, v6")
    ACC = 64
    form = dict(
        mfma=[(wi * 4 + xi, wi, xi, wi < 2) for xi in range(4) for wi in range(3)],
        wread=lambda wi, ks, r: (4, wi * 4096 + w_roff(ks, r, False)),
        xread=lambda xi, ks: (6, ks * 8192 + xi * 1024),
    )
    c = Consumer(a, 2, 1, 2, 3, 4, lambda st, wi: 8 + (st * 3 + wi) * 4, lambda st, xi: 32 + (st * 4 + xi) * 4,
                 lambda ai: ACC + ai * 16)
    consumer_run(a, c, [(form, NK, [])], [4, 6], 40, 42, 44, g["NS"], STAGE, "g1c", True)
    a("s_lshl_b32 s37, s32, 1")
    a("s_add_u32 s37, s37, s35")
    a("s_lshl_b32 s37, s37, 6")
    a("s_lshl_b32 s38, s33, 3")
    a("s_add_u32 s37, s37, s38")
    a("s_lshl_b32 s38, s36, 2")
    a("s_add_u32 s37, s37, s38")
    a("s_lshl_b32 s37, s37, 11")
    a("v_lshlrev_b32 v2, 4, v1")
    a("s_nop 7")
    a("s_nop 7")
    n = 0
    for xi in range(4):
        for wi in range(3):
            b = ACC + (wi * 4 + xi) * 16
            tb = 8 + (n % 6) * 8
            n += 1
            for p in range(8):
                a(f"v_cvt_pk_bf16_f32 v{tb + p}, v{b + 2 * p}, v{b + 2 * p + 1}")
            a(f"s_add_u32 s38, s37, {wi * 4 * MB + xi * 2048}")
            a(f"buffer_store_dwordx4 {vr(tb, 4)}, v2, s[16:19], s38 offen")
            a(f"buffer_store_dwordx4 {vr(tb + 4, 4)}, v2, s[16:19], s38 offen offset:1024")
    a("s_endpgm")
    a.label("g1_prod")
    a("s_sub_u32 s3, s3, 4")
    make_srd(a, 12, 4, 0, 1024 * 3072 * 2)
    make_srd(a, 16, 6, WS_XN, SZ_XN)
    ldw = 3072 * 2
    w_lane_goff(a, 4, 1, ldw, 2, 3)
    a("v_add_u32 v5, 2048, v4")
    a("v_add_u32 v6, 4096, v4")
    a("v_lshlrev_b32 v8, 4, v1")
    a(f"s_mul_i32 s35, s3, {8 * ldw}")
    a("s_lshl_b32 s36, s32, 7")
    a("s_add_u32 s35, s35, s36")
    a("s_lshl_b32 s36, s33, 19")
    a("s_lshl_b32 s37, s3, 12")
    a("s_add_u32 s36, s36, s37")
    a("s_lshl_b32 s38, s3, 10")
    a(f"s_add_u32 s39, s37, {g['WB']}")
    a("s_mov_b32 s40, 0")

    def issue1():
        for cb in range(3):
            if cb == 0:
                a("s_add_u32 m0, s40, s38")
            else:
                a("s_add_u32 m0, m0, 4096")
            a("s_nop 0")
            a(f"buffer_load_dwordx4 v{4 + cb}, s[12:15], s35 offen lds")
        a("s_add_u32 m0, s40, s39")
        a(f"s_add_u32 s35, s35, {g['BK'] * ldw}")
        for p in range(4):
            a(f"buffer_load_dwordx4 v8, s[16:19], s36 offen offset:{p * 1024} lds")
        a(f"s_add_u32 s36, s36, {g['XB']}")
        a(f"s_add_u32 s40, s40, {STAGE}")
        a(f"s_cmp_eq_u32 s40, {STAGE * g['NS']}")
        a("s_cselect_b32 s40, 0, s40")

    producer_run(a, issue1, 7, g["NS"], g["LAG"], NK, 44, "g1")
    a.label("g12_done")
    a("s_endpgm")
    kernel_desc(a, name, 256)


ATT_LDS = 65536


def gen_att(a):
    name = "att_kernel"
    kernel_begin(a, name)
    a("s_cmp_ge_u32 s2, 256")
    a("s_cbranch_scc1 att_done")
    a(f"s_load_dwordx2 s[6:7], s[0:1], {D_WS}")
    a("v_and_b32 v1, 63, v0")
    a("v_lshrrev_b32 v2, 6, v0")
    a("v_lshlrev_b32 v3, 4, v1")
    a("v_readfirstlane_b32 s3, v2")
    a("s_and_b32 s30, s2, 31")
    a("s_lshr_b32 s31, s2, 5")
    a("s_lshl_b32 s32, s30, 17")
    a("s_waitcnt lgkmcnt(0)")
    a("s_add_u32 s4, s6, s32")
    a("s_addc_u32 s5, s7, 0")
    make_srd(a, 8, 4, WS_QKV, 0x20000)
    make_srd(a, 12, 4, WS_QKV + 4 * MB, 0x20000)
    make_srd(a, 16, 4, WS_QKV + 8 * MB, 0x20000)
    make_srd(a, 20, 6, WS_O, SZ_O)
    a("s_lshl_b32 s33, s31, 3")
    a("s_lshl_b32 s34, s3, 1")
    a("s_add_u32 s34, s34, s33")
    a("s_sub_u32 s34, s34, 8")
    a("s_max_i32 s34, s34, 0")
    a("s_lshl_b32 s34, s34, 11")
    a("s_lshl_b32 m0, s3, 12")
    a("s_add_u32 s35, s33, s3")
    for p in range(4):
        a(f"buffer_load_dwordx4 v3, s[12:15], s34 offen offset:{p * 1024} lds")
    a("s_add_u32 m0, m0, 0x8000")
    a("s_lshl_b32 s36, s35, 11")
    for p in range(4):
        a(f"buffer_load_dwordx4 v3, s[16:19], s34 offen offset:{p * 1024} lds")
    Q = 8
    a(f"buffer_load_dwordx4 {vr(Q, 4)}, v3, s[8:11], s36 offen")
    a(f"buffer_load_dwordx4 {vr(Q + 4, 4)}, v3, s[8:11], s36 offen offset:1024")
    a("s_lshl_b32 s37, s3, 11")
    a("v_add_u32 v4, s37, v3")
    a("v_and_b32 v5, 31, v1")
    a("v_lshrrev_b32 v6, 5, v1")
    a("v_lshlrev_b32 v6, 2, v6")
    a("v_sub_u32 v5, v5, v6")
    a("v_mov_b32 v7, 0xff800000")
    S = 64
    KF = 16
    a("s_waitcnt vmcnt(0)")
    a("s_barrier")
    a(f"ds_read_b128 {vr(KF, 4)}, v4")
    a(f"ds_read_b128 {vr(KF + 4, 4)}, v4 offset:1024")
    for j in range(9):
        kf = KF + (j & 1) * 8
        if j < 8:
            nf = KF + ((j + 1) & 1) * 8
            a(f"ds_read_b128 {vr(nf, 4)}, v4 offset:{(j + 1) * 2048}")
            a(f"ds_read_b128 {vr(nf + 4, 4)}, v4 offset:{(j + 1) * 2048 + 1024}")
            a("s_waitcnt lgkmcnt(2)")
        else:
            a("s_waitcnt lgkmcnt(0)")
        sj = vr(S + 16 * j, 16)
        a(f"v_mfma_f32_32x32x16_bf16 {sj}, {vr(kf, 4)}, {vr(Q, 4)}, 0")
        a(f"v_mfma_f32_32x32x16_bf16 {sj}, {vr(kf + 4, 4)}, {vr(Q + 4, 4)}, {sj}")
    VF = 16

    def vread(j):
        b = VF + (j & 3) * 8
        a(f"ds_read_b128 {vr(b, 4)}, v4 offset:{0x8000 + j * 2048}")
        a(f"ds_read_b128 {vr(b + 4, 4)}, v4 offset:{0x8000 + j * 2048 + 1024}")

    a("s_nop 7")
    a("s_nop 7")
    for j in range(4):
        vread(j)
    for i in range(16):
        b = (i >> 2) * 8 + (i & 3)
        a(f"v_cmp_gt_i32 vcc, {b}, v5")
        a("s_nop 1")
        a(f"v_cndmask_b32 v{S + i}, v7, v{S + i}, vcc")
        a(f"v_cndmask_b32 v{S + 128 + i}, v{S + 128 + i}, v7, vcc")
    a("s_cmp_ge_u32 s35, 8")
    a("s_cbranch_scc1 att_allvalid")
    for j in range(8):
        a(f"s_cmp_ge_u32 s35, {8 - j}")
        a("s_cbranch_scc1 att_allvalid")
        for i in range(16):
            a(f"v_mov_b32 v{S + 16 * j + i}, v7")
    a.label("att_allvalid")
    M0, M1 = 48, 49
    a(f"v_max_f32 v{M0}, v{S}, v{S + 1}")
    a(f"v_max_f32 v{M1}, v{S + 2}, v{S + 3}")
    for i in range(4, 144, 4):
        a(f"v_max3_f32 v{M0}, v{M0}, v{S + i}, v{S + i + 1}")
        a(f"v_max3_f32 v{M1}, v{M1}, v{S + i + 2}, v{S + i + 3}")
    a(f"v_max_f32 v{M0}, v{M0}, v{M1}")
    a(f"v_mov_b32 v{M1}, v{M0}")
    a("s_nop 1")
    a(f"v_permlane32_swap_b32 v{M0}, v{M1}")
    a("s_nop 1")
    a(f"v_max_f32 v{M0}, v{M0}, v{M1}")
    sc = (32 ** -0.5) * 1.4426950408889634
    a(f"s_mov_b32 s38, {f2u(sc):#x}")
    a(f"v_mul_f32 v{M0}, s38, v{M0}")
    L0, L1 = 50, 51
    a(f"v_mov_b32 v{L0}, 0")
    a(f"v_mov_b32 v{L1}, 0")
    O = 208
    P = 224
    for j in range(9):
        sb = S + 16 * j
        pb = P + (j & 1) * 8
        for i in range(16):
            a(f"v_fma_f32 v{sb + i}, v{sb + i}, s38, -v{M0}")
        for i in range(16):
            a(f"v_exp_f32 v{sb + i}, v{sb + i}")
        for i in range(0, 16, 2):
            a(f"v_add_f32 v{L0}, v{L0}, v{sb + i}")
            a(f"v_add_f32 v{L1}, v{L1}, v{sb + i + 1}")
        for i in range(8):
            a(f"v_cvt_pk_bf16_f32 v{pb + i}, v{sb + 2 * i}, v{sb + 2 * i + 1}")
        vb = VF + (j & 3) * 8
        rem = min(3, 8 - j)
        a(f"s_waitcnt lgkmcnt({2 * rem})")
        a("s_nop 0")
        a(f"v_mfma_f32_32x32x16_bf16 {vr(O, 16)}, {vr(vb, 4)}, {vr(pb, 4)}, {'0' if j == 0 else vr(O, 16)}")
        a(f"v_mfma_f32_32x32x16_bf16 {vr(O, 16)}, {vr(vb + 4, 4)}, {vr(pb + 4, 4)}, {vr(O, 16)}")
        if j + 4 < 9:
            vread(j + 4)
    a(f"v_add_f32 v{L0}, v{L0}, v{L1}")
    a(f"v_mov_b32 v{L1}, v{L0}")
    a("s_nop 1")
    a(f"v_permlane32_swap_b32 v{L0}, v{L1}")
    a("s_nop 1")
    a(f"v_add_f32 v{L0}, v{L0}, v{L1}")
    a(f"v_rcp_f32 v{L0}, v{L0}")
    a("s_lshr_b32 s39, s35, 2")
    a("s_lshl_b32 s39, s39, 6")
    a("s_lshl_b32 s40, s30, 1")
    a("s_add_u32 s39, s39, s40")
    a("s_lshl_b32 s39, s39, 12")
    a("s_and_b32 s40, s35, 3")
    a("s_lshl_b32 s40, s40, 10")
    a("s_add_u32 s39, s39, s40")
    a("s_add_u32 s40, s39, 4096")
    a("s_nop 7")
    for i in range(16):
        a(f"v_mul_f32 v{O + i}, v{O + i}, v{L0}")
    for i in range(8):
        a(f"v_cvt_pk_bf16_f32 v{P + i}, v{O + 2 * i}, v{O + 2 * i + 1}")
    a(f"buffer_store_dwordx4 {vr(P, 4)}, v3, s[20:23], s39 offen")
    a(f"buffer_store_dwordx4 {vr(P + 4, 4)}, v3, s[20:23], s40 offen")
    a.label("att_done")
    a("s_endpgm")
    kernel_desc(a, name, 240)


G3 = dict(BK=64, NS=5, LAG=1, WB=16384, XB=16384)
G3_LDS = G3["NS"] * (G3["WB"] + G3["XB"])
G3_GRID = 128


def gen_g3(a):
    name = "g3_kernel"
    g = G3
    STAGE = g["WB"] + g["XB"]
    NKY, NKO = 3584 // 64, 1024 // 64
    kernel_begin(a, name)
    a(f"s_cmp_ge_u32 s2, {G3_GRID}")
    a("s_cbranch_scc1 g3_done")
    a(f"s_load_dwordx2 s[4:5], s[0:1], {A_X}")
    a(f"s_load_dwordx2 s[6:7], s[0:1], {A_WO}")
    a(f"s_load_dwordx4 s[8:11], s[0:1], {B_W2}")
    a(f"s_load_dwordx2 s[24:25], s[0:1], {D_OUT}")
    a(f"s_load_dwordx2 s[26:27], s[0:1], {D_WS}")
    a("v_and_b32 v1, 63, v0")
    a("v_lshrrev_b32 v2, 6, v0")
    a("s_and_b32 s30, s2, 7")
    a("v_readfirstlane_b32 s3, v2")
    a("s_lshr_b32 s31, s2, 3")
    a("s_and_b32 s32, s30, 1")
    a("s_lshl_b32 s32, s32, 2")
    a("s_and_b32 s33, s31, 3")
    a("s_add_u32 s32, s32, s33")
    a("s_lshr_b32 s33, s30, 1")
    a("s_lshl_b32 s33, s33, 2")
    a("s_lshr_b32 s34, s31, 2")
    a("s_add_u32 s33, s33, s34")
    a("s_waitcnt lgkmcnt(0)")
    a("s_cmp_ge_u32 s3, 4")
    a("s_cbranch_scc1 g3_prod")
    make_srd(a, 12, 4, 0, 4 * MB)
    make_srd(a, 16, 10, 0, 4096)
    make_srd(a, 20, 24, 0, 4 * MB)
    a("s_and_b32 s35, s3, 1")
    a("s_lshr_b32 s36, s3, 1")
    ACC = 128
    a("v_and_b32 v2, 31, v1")
    a("v_lshrrev_b32 v3, 5, v1")
    a("v_lshlrev_b32 v7, 11, v2")
    a("v_lshl_add_u32 v8, v3, 3, v7")
    a("v_lshl_add_u32 v7, v3, 4, v7")
    a("v_lshlrev_b32 v2, 1, v2")
    a("s_lshl_b32 s37, s33, 7")
    a("s_lshl_b32 s38, s36, 6")
    a("s_add_u32 s37, s37, s38")
    a("s_lshl_b32 s39, s37, 1")
    a("s_lshl_b32 s37, s37, 11")
    a("s_lshl_b32 s38, s32, 8")
    a("s_add_u32 s37, s37, s38")
    a("s_lshl_b32 s38, s35, 7")
    a("s_add_u32 s37, s37, s38")
    a("s_add_u32 s38, s37, 0x10000")
    XT = 64
    for di in range(2):
        for si in range(2):
            for gg in range(4):
                a(f"buffer_load_dwordx2 {vr(XT + ((di * 2 + si) * 4 + gg) * 2, 2)}, v8, s[12:15], s{37 + si} offen offset:{di * 64 + gg * 16}")
    a("buffer_load_ushort v96, v2, s[16:19], s39 offen")
    a("buffer_load_ushort v97, v2, s[16:19], s39 offen offset:64")
    w_lane_laddr(a, 9, 1, True, 2, 3)
    a("v_lshlrev_b32 v10, 4, v1")
    a(f"v_add_u32 v10, {g['WB']}, v10")
    a("s_lshl_b32 s46, s36, 13")
    a("s_lshl_b32 s47, s35, 11")
    a("s_lshl_b32 s48, s35, 13")
    a("s_lshl_b32 s49, s36, 11")
    a("v_add_u32 v4, s46, v9")
    a("v_xor_b32 v5, 64, v4")
    a("v_add_u32 v6, s47, v10")
    a("s_sub_u32 s48, s48, s46")
    a("s_sub_u32 s49, s49, s47")
    a("s_mov_b32 s39, 0xffff0000")
    a("s_waitcnt vmcnt(0)")
    a("v_lshlrev_b32 v96, 16, v96")
    a("v_lshlrev_b32 v97, 16, v97")
    for di in range(2):
        for si in range(2):
            for gg in range(4):
                for j in range(2):
                    src = XT + ((di * 2 + si) * 4 + gg) * 2 + j
                    d = ACC + (di * 2 + si) * 16 + gg * 4 + 2 * j
                    a(f"v_lshlrev_b32 v{d}, 16, v{src}")
                    a(f"v_and_b32 v{d + 1}, s39, v{src}")
                    a(f"v_add_f32 v{d}, v{d}, v{96 + si}")
                    a(f"v_add_f32 v{d + 1}, v{d + 1}, v{96 + si}")
    wread = lambda wi, ks, r: (4 + wi, w_roff(ks, r, True))
    xread = lambda xi, ks: (6, ks * 4096 + xi * 1024)
    formY = dict(mfma=[(di * 2 + si, si, di, False) for (di, si) in ((0, 0), (1, 0), (1, 1), (0, 1))], wread=wread, xread=xread)
    formO = dict(mfma=[(di * 2 + si, di, si, True) for (di, si) in ((0, 0), (0, 1), (1, 1), (1, 0))], wread=wread, xread=xread)
    c = Consumer(a, 4, 2, 4, 2, 2, lambda st, wi: 16 + (st * 4 + wi) * 4, lambda st, xi: 16 + (st * 4 + 2 + xi) * 4,
                 lambda ai: ACC + ai * 16)
    sw = ["v_add_u32 v4, s48, v4", "v_add_u32 v5, s48, v5", "v_add_u32 v6, s49, v6"]
    consumer_run(a, c, [(formY, NKY, []), (formO, NKO, sw)], [4, 5, 6], 40, 42, 44, g["NS"], STAGE, "g3c", False)
    a("s_nop 7")
    a("s_nop 7")
    n = 0
    for di in range(2):
        for si in range(2):
            b = ACC + (di * 2 + si) * 16
            tb = 16 + n * 8
            n += 1
            for p in range(8):
                a(f"v_cvt_pk_bf16_f32 v{tb + p}, v{b + 2 * p}, v{b + 2 * p + 1}")
            a("s_nop 1")
            for q in range(2):
                a(f"v_permlane32_swap_b32 v{tb + 4 * q}, v{tb + 4 * q + 2}")
                a(f"v_permlane32_swap_b32 v{tb + 4 * q + 1}, v{tb + 4 * q + 3}")
            a("s_nop 1")
            for q in range(2):
                a(f"buffer_store_dwordx4 {vr(tb + 4 * q, 4)}, v7, s[20:23], s{37 + si} offen offset:{di * 64 + q * 32}")
    a("s_endpgm")
    a.label("g3_prod")
    a("s_sub_u32 s3, s3, 4")
    make_srd(a, 12, 8, 0, 3584 * 2048 * 2)
    make_srd(a, 16, 26, WS_U, SZ_U)
    ldY, ldO = 4096, 2048
    w_lane_goff(a, 4, 1, ldY, 2, 3)
    a("v_add_u32 v5, 128, v4")
    w_lane_goff(a, 6, 1, ldO, 2, 3)
    a("v_add_u32 v7, 128, v6")
    a("v_lshlrev_b32 v8, 4, v1")
    a(f"s_mul_i32 s35, s3, {16 * ldY}")
    a("s_lshl_b32 s36, s33, 8")
    a("s_add_u32 s35, s35, s36")
    a(f"s_mul_i32 s36, s32, {224 * 4096}")
    a("s_lshl_b32 s37, s3, 12")
    a("s_add_u32 s36, s36, s37")
    a("s_lshl_b32 s38, s3, 11")
    a(f"s_add_u32 s39, s37, {g['WB']}")
    a("s_mov_b32 s40, 0")
    a(f"s_mov_b32 s41, {8 * ldY}")
    a(f"s_mov_b32 s42, {64 * ldY}")

    def issue3():
        a("s_add_u32 m0, s40, s38")
        a("s_add_u32 s43, s35, s41")
        a("buffer_load_dwordx4 v4, s[12:15], s35 offen lds")
        a("s_add_u32 m0, m0, 1024")
        a("s_nop 0")
        a("buffer_load_dwordx4 v4, s[12:15], s43 offen lds")
        a("s_add_u32 m0, m0, 8192")
        a("s_nop 0")
        a("buffer_load_dwordx4 v5, s[12:15], s43 offen lds")
        a("s_sub_u32 m0, m0, 1024")
        a("s_nop 0")
        a("buffer_load_dwordx4 v5, s[12:15], s35 offen lds")
        a("s_add_u32 m0, s40, s39")
        a("s_add_u32 s35, s35, s42")
        for p in range(4):
            a(f"buffer_load_dwordx4 v8, s[16:19], s36 offen offset:{p * 1024} lds")
        a(f"s_add_u32 s36, s36, {g['XB']}")
        a(f"s_add_u32 s40, s40, {STAGE}")
        a(f"s_cmp_eq_u32 s40, {STAGE * g['NS']}")
        a("s_cselect_b32 s40, 0, s40")

    b = Asm()
    make_srd(b, 12, 6, 0, 1024 * 1024 * 2)
    make_srd(b, 16, 26, WS_O, SZ_O)
    b("v_mov_b32 v4, v6")
    b("v_mov_b32 v5, v7")
    b(f"s_mul_i32 s35, s3, {16 * ldO}")
    b("s_lshl_b32 s36, s32, 8")
    b("s_add_u32 s35, s35, s36")
    b("s_lshl_b32 s36, s33, 18")
    b("s_add_u32 s36, s36, s37")
    b(f"s_mov_b32 s41, {8 * ldO}")
    b(f"s_mov_b32 s42, {64 * ldO}")
    code = [s.strip() for s in b.L]
    producer_run(a, issue3, 8, g["NS"], g["LAG"], NKY + NKO, 44, "g3", switch=(NKY, code))
    a.label("g3_done")
    a("s_endpgm")
    kernel_desc(a, name, 256)


HEADER = open("cdna_kernels/" + NAME + ".s.ref").read().split("; Override launch")[0]


def main(out):
    a = Asm()
    a.raw(HEADER.rstrip("\n"))
    a.raw(f"; @launch kernel=ln_kernel grid=(256,1,1) block=(512,1,1) lds={LN_LDS}")
    a.raw(f"; @launch kernel=g12_kernel grid=({G12_GRID},1,1) block=(512,1,1) lds={G12_LDS}")
    a.raw(f"; @launch kernel=att_kernel grid=(256,1,1) block=(512,1,1) lds={ATT_LDS}")
    a.raw(f"; @launch kernel=g3_kernel grid=({G3_GRID},1,1) block=(512,1,1) lds={G3_LDS}")
    a.raw('.amdgcn_target "amdgcn-amd-amdhsa--gfx950"')
    gen_ln(a)
    gen_g12(a)
    gen_att(a)
    gen_g3(a)
    open(out, "w").write(a.text())


if __name__ == "__main__":
    main(sys.argv[1] if len(sys.argv) > 1 else "cdna_kernels/" + NAME + ".s")
```

```python
import sys, struct

NAME = "parallel_sum__sliding_block__mixer_token_mlp__prompt"
MB = 1 << 20
WS_XN, WS_HT, WS_QKV, WS_U, WS_O = 0, 4 * MB, 8 * MB, 20 * MB, 28 * MB
SZ_XN, SZ_HT, SZ_QKV, SZ_U, SZ_O = 4 * MB, 4 * MB, 12 * MB, 8 * 224 * 4096, 4 * MB
A_X, A_WQKV, A_WO, B_X, B_W1, B_B1, B_W2, B_B2, D_OUT, D_DBG, D_WS = [8 * i for i in range(11)]


def f2u(x):
    return struct.unpack("<I", struct.pack("<f", x))[0]


import os
ABL = os.environ.get("ABL", "").split(",")


class Asm:
    def __init__(self):
        self.L = []
        self.gemm = False

    def __call__(self, s):
        if self.gemm:
            if "noload" in ABL and s.endswith(" lds"):
                return
            if s.endswith(" lds") and os.environ.get("LDF"):
                s = s[:-4] + " " + os.environ["LDF"] + " lds"
            if "nomfma" in ABL and s.startswith("v_mfma"):
                return
            if "noread" in ABL and s.startswith("ds_read"):
                return
        self.L.append("    " + s)

    def label(self, s):
        self.L.append(s + ":")

    def raw(self, s):
        self.L.append(s)

    def text(self):
        return "\n".join(self.L) + "\n"


def vr(b, n):
    return f"v[{b}:{b + n - 1}]"


def sr(b, n):
    return f"s[{b}:{b + n - 1}]"


def kernel_begin(a, name):
    a.raw(".text")
    a.raw(f".globl {name}")
    a.raw(".p2align 8")
    a.raw(f".type {name},@function")
    a.label(name)


def kernel_desc(a, name, vgpr, sgpr=102):
    acc = (vgpr + 3) // 4 * 4
    a.raw('.section .rodata,"a"')
    a.raw(".p2align 6")
    a.raw(f".amdhsa_kernel {name}")
    a.raw(f"  .amdhsa_next_free_vgpr {vgpr}")
    a.raw(f"  .amdhsa_next_free_sgpr {sgpr}")
    a.raw(f"  .amdhsa_accum_offset {acc}")
    a.raw("  .amdhsa_group_segment_fixed_size 0")
    a.raw("  .amdhsa_kernarg_size 88")
    a.raw("  .amdhsa_user_sgpr_count 2")
    a.raw("  .amdhsa_user_sgpr_kernarg_segment_ptr 1")
    a.raw("  .amdhsa_system_sgpr_workgroup_id_x 1")
    a.raw("  .amdhsa_float_denorm_mode_32 3")
    a.raw(".end_amdhsa_kernel")


def make_srd(a, d, base, off, size):
    if off:
        a(f"s_add_u32 s{d}, s{base}, {off:#x}")
        a(f"s_addc_u32 s{d + 1}, s{base + 1}, 0")
    else:
        a(f"s_mov_b32 s{d}, s{base}")
        a(f"s_mov_b32 s{d + 1}, s{base + 1}")
    a(f"s_mov_b32 s{d + 2}, {size:#x}")
    a(f"s_mov_b32 s{d + 3}, 0x00020000")


STAMP = "stamp" in ABL
WS_STAMP = 64 * MB


def stamp(a, i):
    if not STAMP:
        return
    a(f"s_memtime s[{60 + 4 * i}:{61 + 4 * i}]")
    a(f"s_memrealtime s[{62 + 4 * i}:{63 + 4 * i}]")
    a("s_waitcnt lgkmcnt(0)")


def stamp_store(a, wsb, kid, n):
    if not STAMP:
        return
    make_srd(a, 92, wsb, WS_STAMP, 16 * MB)
    a("s_lshl_b32 s96, s2, 3")
    a("s_add_u32 s96, s96, s3")
    a(f"s_add_u32 s96, s96, {kid * 4096}")
    a("s_lshl_b32 s96, s96, 7")
    a("v_mov_b32 v0, 0")
    for i in range(n):
        for j in range(4):
            a(f"v_mov_b32 v{4 + j}, s{60 + 4 * i + j}")
        a(f"buffer_store_dwordx4 v[4:7], v0, s[92:95], s96 offen offset:{16 * i}")
        a("s_nop 2")


PF_LN_QKV = int(float(os.environ.get("PF_QKV", "3")) * MB) // 8192 * 8192
PF_LN_W1 = int(float(os.environ.get("PF_W1", "6")) * MB) // 8192 * 8192
PF_G12 = int(os.environ.get("PF_G12", "1"))
LN_RSA = 2048 + 16
LN_RSB = 2048 + 64
LN_OFFB = 8 * LN_RSA
LN_LDS = LN_OFFB + 8 * LN_RSB


def wave_reduce(a, regs):
    steps = ["row_shr:1 row_mask:0xf bank_mask:0xf bound_ctrl:0",
             "row_shr:2 row_mask:0xf bank_mask:0xf bound_ctrl:0",
             "row_shr:4 row_mask:0xf bank_mask:0xf bound_ctrl:0",
             "row_shr:8 row_mask:0xf bank_mask:0xf bound_ctrl:0",
             "row_bcast:15 row_mask:0xa bank_mask:0xf",
             "row_bcast:31 row_mask:0xc bank_mask:0xf"]
    for st in steps:
        a("s_nop 1")
        for r in regs:
            a(f"v_add_f32_dpp v{r}, v{r}, v{r} {st}")


def round_bf(a, r, tmp=None):
    a(f"v_cvt_pk_bf16_f32 v{r}, v{r}, v{r}")
    a(f"v_lshlrev_b32 v{r}, 16, v{r}")


def gen_ln(a):
    name = "ln_kernel"
    kernel_begin(a, name)
    a("s_cmp_ge_u32 s2, 256")
    a("s_cbranch_scc1 ln_done")
    stamp(a, 0)
    a(f"s_load_dwordx2 s[4:5], s[0:1], {A_X}")
    a(f"s_load_dwordx2 s[6:7], s[0:1], {D_WS}")
    a(f"s_load_dwordx2 s[30:31], s[0:1], {A_WQKV}")
    a(f"s_load_dwordx2 s[32:33], s[0:1], {B_W1}")
    a("v_and_b32 v1, 63, v0")
    a("v_lshrrev_b32 v2, 6, v0")
    a("v_lshlrev_b32 v3, 4, v1")
    a("v_readfirstlane_b32 s3, v2")
    a("s_lshl_b32 s20, s2, 3")
    a("s_add_u32 s20, s20, s3")
    a("s_lshl_b32 s21, s20, 11")
    a("s_waitcnt lgkmcnt(0)")
    make_srd(a, 8, 4, 0, 4 * MB)
    make_srd(a, 12, 6, WS_XN, SZ_XN)
    make_srd(a, 16, 6, WS_HT, SZ_HT)
    a("buffer_load_dwordx4 v[8:11], v3, s[8:11], s21 offen")
    a("buffer_load_dwordx4 v[12:15], v3, s[8:11], s21 offen offset:1024")
    npf = 0
    a("v_lshlrev_b32 v60, 7, v1")
    a("s_lshl_b32 s34, s20, 13")
    if PF_LN_QKV:
        make_srd(a, 36, 30, 0, PF_LN_QKV)
        a("buffer_load_dword v61, v60, s[36:39], s34 offen")
        npf += 1
    if PF_LN_W1:
        make_srd(a, 40, 32, 0, PF_LN_W1)
        a("buffer_load_dword v62, v60, s[40:43], s34 offen")
        npf += 1
    a("s_mov_b32 s22, 0xffff0000")
    a(f"s_mov_b32 s23, {f2u(1.0 / 1024):#x}")
    a(f"s_mov_b32 s24, {f2u(1e-5):#x}")
    X = 16
    a(f"s_waitcnt vmcnt({npf})")
    stamp(a, 1)
    for i in range(8):
        a(f"v_lshlrev_b32 v{X + 2 * i}, 16, v{8 + i}")
        a(f"v_and_b32 v{X + 2 * i + 1}, s22, v{8 + i}")
    a(f"v_add_f32 v4, v{X}, v{X + 1}")
    a(f"v_add_f32 v5, v{X + 2}, v{X + 3}")
    for i in range(4, 16, 2):
        a(f"v_add_f32 v4, v4, v{X + i}")
        a(f"v_add_f32 v5, v5, v{X + i + 1}")
    a("v_add_f32 v4, v4, v5")
    wave_reduce(a, [4])
    a("s_nop 1")
    a("v_readlane_b32 s25, v4, 63")
    a("s_nop 1")
    a("v_mov_b32 v6, s23")
    a("v_mul_f32 v6, s25, v6")
    D = 32
    for i in range(16):
        a(f"v_sub_f32 v{D + i}, v{X + i}, v6")
    a(f"v_mul_f32 v4, v{D}, v{D}")
    a(f"v_mul_f32 v5, v{D + 1}, v{D + 1}")
    for i in range(2, 16, 2):
        a(f"v_fmac_f32 v4, v{D + i}, v{D + i}")
        a(f"v_fmac_f32 v5, v{D + i + 1}, v{D + i + 1}")
    a("v_add_f32 v4, v4, v5")
    wave_reduce(a, [4])
    a("s_nop 1")
    a("v_readlane_b32 s25, v4, 63")
    round_bf(a, 6)
    a("v_mov_b32 v7, s23")
    a("v_mul_f32 v7, s25, v7")

    def finish(src, dst_pk, mean, var):
        round_bf(a, var)
        a(f"v_add_f32 v{var}, s24, v{var}")
        round_bf(a, var)
        a(f"v_sqrt_f32 v{var}, v{var}")
        a("s_nop 0")
        round_bf(a, var)
        a(f"v_rcp_f32 v48, v{var}")
        for i in range(16):
            a(f"v_sub_f32 v{D + i}, v{src + i}, v{mean}")
        for i in range(8):
            a(f"v_cvt_pk_bf16_f32 v{dst_pk + i}, v{D + 2 * i}, v{D + 2 * i + 1}")
        for i in range(8):
            a(f"v_lshlrev_b32 v{D + 2 * i}, 16, v{dst_pk + i}")
            a(f"v_and_b32 v{D + 2 * i + 1}, s22, v{dst_pk + i}")
        for i in range(16):
            a(f"v_mul_f32 v{src + i}, v{D + i}, v48")
        for i in range(16):
            a(f"v_fma_f32 v{D + i}, -v{src + i}, v{var}, v{D + i}")
        for i in range(16):
            a(f"v_fmac_f32 v{src + i}, v{D + i}, v48")
        for i in range(8):
            a(f"v_cvt_pk_bf16_f32 v{dst_pk + i}, v{src + 2 * i}, v{src + 2 * i + 1}")
        for i in range(8):
            a(f"v_lshlrev_b32 v{src + 2 * i}, 16, v{dst_pk + i}")
            a(f"v_and_b32 v{src + 2 * i + 1}, s22, v{dst_pk + i}")

    finish(X, 8, 6, 7)
    a(f"s_mul_i32 s26, s3, {LN_RSA}")
    a("v_add_u32 v50, s26, v3")
    a("ds_write_b128 v50, v[8:11]")
    a("ds_write_b128 v50, v[12:15] offset:1024")
    a(f"v_add_f32 v4, v{X}, v{X + 1}")
    a(f"v_mul_f32 v5, v{X}, v{X}")
    a(f"v_fmac_f32 v5, v{X + 1}, v{X + 1}")
    for i in range(2, 16):
        a(f"v_add_f32 v4, v4, v{X + i}")
        a(f"v_fmac_f32 v5, v{X + i}, v{X + i}")
    wave_reduce(a, [4, 5])
    a("s_nop 1")
    a("v_readlane_b32 s25, v4, 63")
    a("v_readlane_b32 s27, v5, 63")
    a("v_mov_b32 v6, s23")
    a("v_mov_b32 v7, s23")
    a("v_mul_f32 v6, s25, v6")
    a("v_mul_f32 v7, s27, v7")
    a("v_fma_f32 v7, -v6, v6, v7")
    a("v_max_f32 v7, 0, v7")
    round_bf(a, 6)
    finish(X, 52, 6, 7)
    a(f"s_mul_i32 s26, s3, {LN_RSB}")
    a(f"s_add_u32 s26, s26, {LN_OFFB}")
    a("v_add_u32 v50, s26, v3")
    a("ds_write_b128 v50, v[52:55]")
    a("ds_write_b128 v50, v[56:59] offset:1024")
    a("v_and_b32 v4, 7, v0")
    a("v_lshrrev_b32 v5, 3, v0")
    a(f"v_mul_u32_u24 v6, {LN_RSA}, v4")
    a("v_lshl_add_u32 v6, v5, 4, v6")
    a("v_lshrrev_b32 v7, 1, v5")
    a("v_lshlrev_b32 v7, 13, v7")
    a("v_and_b32 v5, 1, v5")
    a("v_lshl_add_u32 v7, v5, 9, v7")
    a("v_lshl_add_u32 v7, v4, 4, v7")
    a("s_lshr_b32 s26, s2, 5")
    a("s_lshl_b32 s26, s26, 19")
    a("s_lshr_b32 s27, s2, 2")
    a("s_and_b32 s27, s27, 7")
    a("s_lshl_b32 s27, s27, 10")
    a("s_add_u32 s26, s26, s27")
    a("s_and_b32 s27, s2, 3")
    a("s_lshl_b32 s27, s27, 7")
    a("s_add_u32 s26, s26, s27")
    a("s_add_u32 s27, s26, 0x40000")
    a("v_bfe_u32 v4, v1, 2, 2")
    a(f"v_mul_u32_u24 v4, {LN_RSB}, v4")
    a("v_lshrrev_b32 v5, 4, v1")
    a("v_lshl_add_u32 v4, v5, 5, v4")
    a("v_and_b32 v5, 3, v1")
    a("v_lshl_add_u32 v4, v5, 3, v4")
    a("s_lshl_b32 s28, s3, 7")
    a(f"s_add_u32 s28, s28, {LN_OFFB}")
    a("v_add_u32 v4, s28, v4")
    a("v_and_b32 v5, 31, v1")
    a("v_lshlrev_b32 v5, 4, v5")
    a("v_lshrrev_b32 v49, 5, v1")
    a("v_lshl_add_u32 v5, v49, 10, v5")
    a("s_lshr_b32 s28, s3, 1")
    a("s_lshl_b32 s28, s28, 19")
    a("s_lshr_b32 s29, s2, 1")
    a("s_lshl_b32 s29, s29, 12")
    a("s_add_u32 s28, s28, s29")
    a("s_and_b32 s29, s3, 1")
    a("s_lshl_b32 s29, s29, 11")
    a("s_add_u32 s28, s28, s29")
    a("s_and_b32 s29, s2, 1")
    a("s_lshl_b32 s29, s29, 9")
    a("s_add_u32 s28, s28, s29")
    a("s_add_u32 s29, s28, 0x200000")
    a("s_waitcnt lgkmcnt(0)")
    stamp(a, 2)
    a("s_barrier")
    a("ds_read_b128 v[8:11], v6")
    a("ds_read_b128 v[12:15], v6 offset:1024")
    a("ds_read_b64_tr_b16 v[16:17], v4")
    a(f"ds_read_b64_tr_b16 v[18:19], v4 offset:{4 * LN_RSB}")
    a("ds_read_b64_tr_b16 v[20:21], v4 offset:1024")
    a(f"ds_read_b64_tr_b16 v[22:23], v4 offset:{4 * LN_RSB + 1024}")
    a("s_waitcnt lgkmcnt(5)")
    a("buffer_store_dwordx4 v[8:11], v7, s[12:15], s26 offen")
    a("s_waitcnt lgkmcnt(4)")
    a("buffer_store_dwordx4 v[12:15], v7, s[12:15], s27 offen")
    a("s_waitcnt lgkmcnt(2)")
    a("buffer_store_dwordx4 v[16:19], v5, s[16:19], s28 offen")
    a("s_waitcnt lgkmcnt(0)")
    a("buffer_store_dwordx4 v[20:23], v5, s[16:19], s29 offen")
    stamp(a, 3)
    if STAMP:
        a("s_waitcnt vmcnt(0)")
    stamp(a, 4)
    stamp_store(a, 6, 0, 5)
    a.label("ln_done")
    a("s_endpgm")
    kernel_desc(a, name, 64, 102 if STAMP else 48)


class Consumer:
    def __init__(self, a, KS, PD, NSET, nW, nX, wreg, xreg, acc, rpg=2):
        self.a, self.KS, self.PD, self.NSET = a, KS, PD, NSET
        self.nW, self.nX = nW, nX
        self.wreg, self.xreg, self.acc = wreg, xreg, acc
        self.q = []
        self.rpg = rpg

    def reads(self, form, ks, st):
        out = []
        seen = set()
        for (ai, wi, xi, wA) in form["mfma"]:
            if ("W", wi) not in seen:
                seen.add(("W", wi))
                for r in range(2):
                    ad, off = form["wread"](wi, ks, r)
                    out.append((("W", wi, st), f"ds_read_b64_tr_b16 {vr(self.wreg(st, wi) + 2 * r, 2)}, v{ad} offset:{off}"))
            if ("X", xi) not in seen:
                seen.add(("X", xi))
                ad, off = form["xread"](xi, ks)
                out.append((("X", xi, st), f"ds_read_b128 {vr(self.xreg(st, xi), 4)}, v{ad} offset:{off}"))
        return out

    def need(self, tags):
        pos = -1
        for i, t in enumerate(self.q):
            if t in tags:
                pos = i
        if pos >= 0:
            n = len(self.q) - 1 - pos
            self.a(f"s_waitcnt lgkmcnt({min(n, 15)})")
            if n > 15:
                pos = len(self.q) - 1 - 15
            self.q = self.q[pos + 1:]

    def slot(self, sigma, mform, rform, barrier, extra=(), zero_c=False, tight=False):
        a = self.a
        rd = self.reads(rform, sigma % self.KS, sigma % self.NSET) if rform else []
        extra = list(extra)
        if mform is None:
            if barrier:
                if tight:
                    a("s_waitcnt lgkmcnt(0)")
                    self.q = []
                a("s_barrier")
            for t, s in rd:
                a(s)
                self.q.append(t)
            for s in extra:
                a(s)
            return
        st = (sigma - self.PD) % self.NSET
        ml = mform["mfma"]
        for i, (ai, wi, xi, wA) in enumerate(ml):
            self.need({("W", wi, st), ("X", xi, st)})
            w, x = vr(self.wreg(st, wi), 4), vr(self.xreg(st, xi), 4)
            A, B = (w, x) if wA else (x, w)
            c = vr(self.acc(ai), 16)
            a(f"v_mfma_f32_32x32x16_bf16 {c}, {A}, {B}, {'0' if zero_c else c}")
            if i == 0 and barrier:
                if tight:
                    a("s_waitcnt lgkmcnt(0)")
                    self.q = []
                a("s_barrier")
            last = i == len(ml) - 1
            n = len(rd) if last else self.rpg
            if rd:
                for t, s in rd[:n]:
                    a(s)
                    self.q.append(t)
                rd = rd[n:]
            elif extra:
                n = len(extra) if last else 3
                for s in extra[:n]:
                    a(s)
                extra = extra[n:]
        for s in extra:
            a(s)

    def prime(self, rform):
        self.q = []
        for s in range(self.KS):
            for t, _ in self.reads(rform, s, s % self.NSET):
                self.q.append(t)


def base_update(bases, sB, sD, NS, STAGE):
    out = [f"s_add_u32 s{sB}, s{sB}, 1",
           f"s_cmp_eq_u32 s{sB}, {NS}",
           f"s_cselect_b32 s{sD}, {(-(NS - 1) * STAGE) & 0xffffffff:#x}, s{sD + 1}",
           f"s_cselect_b32 s{sB}, 0, s{sB}"]
    for b in bases:
        out.append(f"v_add_u32 v{b}, s{sD}, v{b}")
    return out


TD = int(os.environ.get("TD", "0"))


def touch(vT, vD):
    if TD == 0:
        return []
    return [f"buffer_load_dword v{vD}, v{vT}, s[52:55], s56 offen", "s_add_u32 s56, s56, s57"]


def consumer_run(a, c, forms, bases, sB, sD, sCnt, NS, STAGE, tag, zero_c, tight=False, tch=()):
    KS, PD = c.KS, c.PD
    a(f"s_mov_b32 s{sB}, 0")
    a(f"s_mov_b32 s{sD + 1}, {STAGE}")
    upd = base_update(bases, sB, sD, NS, STAGE) + list(tch)
    prev = None
    for fi, (form, NK, sw) in enumerate(forms):
        for s in sw:
            a(s)
        if prev is not None:
            c.prime(prev)
        for s in range(KS):
            mf = (form if s >= PD else prev)
            c.slot(s, mf, form, s == 0, extra=upd if s == KS - 1 else (),
                   zero_c=(zero_c and prev is None and s == PD), tight=tight)
        if NK > 1:
            a(f"s_mov_b32 s{sCnt}, {NK - 1}")
            a.label(f"{tag}_loop{fi}")
            c.prime(form)
            for s in range(KS):
                ex = []
                if s == KS - 1:
                    ex = upd + [f"s_sub_u32 s{sCnt}, s{sCnt}, 1", f"s_cmp_lg_u32 s{sCnt}, 0"]
                c.slot(s, form, form, s == 0, extra=ex, tight=tight)
            a(f"s_cbranch_scc1 {tag}_loop{fi}")
        prev = form
    c.prime(prev)
    for s in range(PD):
        c.slot(s, prev, None, False)


def producer_run(a, issue, P, NS, LAG, NK, sCnt, tag, switch=None):
    assert (NS - 1) * P <= 63
    for k in range(NS):
        issue()
    for j in range(LAG + 1):
        a(f"s_waitcnt vmcnt({(NS - 1 - j) * P})")
        a("s_barrier")
    segs = []
    if switch is None:
        segs = [(NK - NS, None)]
    else:
        kk, code = switch
        assert NS <= kk < NK
        segs = [(kk - NS, None), (NK - kk, code)]
    for si, (cnt, code) in enumerate(segs):
        if code:
            for s in code:
                a(s)
        if cnt <= 0:
            continue
        a(f"s_mov_b32 s{sCnt}, {cnt}")
        a.label(f"{tag}_ploop{si}")
        a(f"s_waitcnt vmcnt({(NS - 2 - LAG) * P})")
        a("s_barrier")
        issue()
        a(f"s_sub_u32 s{sCnt}, s{sCnt}, 1")
        a(f"s_cmp_lg_u32 s{sCnt}, 0")
        a(f"s_cbranch_scc1 {tag}_ploop{si}")
    for j in range(NK - NS + LAG + 1, NK):
        a(f"s_waitcnt vmcnt({(NK - 1 - j) * P})")
        a("s_barrier")


def w_lane_goff(a, dst, lane, ldw, t0, t1):
    a(f"v_lshrrev_b32 v{t0}, 3, v{lane}")
    a(f"s_mov_b32 s90, {ldw}")
    a(f"v_mul_lo_u32 v{dst}, v{t0}, s90")
    a(f"v_bfe_u32 v{t0}, v{lane}, 4, 1")
    a(f"v_lshlrev_b32 v{t0}, 2, v{t0}")
    a(f"v_and_b32 v{t1}, 7, v{lane}")
    a(f"v_xor_b32 v{t0}, v{t0}, v{t1}")
    a(f"v_lshl_add_u32 v{dst}, v{t0}, 4, v{dst}")


def w_lane_laddr(a, dst, lane, perm, t0, t1):
    a(f"v_bfe_u32 v{t0}, v{lane}, 2, 2")
    a(f"v_lshrrev_b32 v{t1}, 5, v{lane}")
    a(f"v_lshl_add_u32 v{t0}, v{t1}, {2 if perm else 3}, v{t0}")
    a(f"v_lshlrev_b32 v{dst}, 7, v{t0}")
    a(f"v_bfe_u32 v{t0}, v{lane}, 3, 1")
    a(f"v_lshl_add_u32 v{dst}, v{t0}, 6, v{dst}")
    a(f"v_bfe_u32 v{t0}, v{lane}, 4, 1")
    a(f"v_lshl_add_u32 v{dst}, v{t0}, 5, v{dst}")
    a(f"v_and_b32 v{t0}, 3, v{lane}")
    a(f"v_lshl_add_u32 v{dst}, v{t0}, 3, v{dst}")


def w_roff(ks, r, perm):
    return (16 * ks + (8 if perm else 4) * r) * 128


G1 = dict(BK=32, NS=5, LAG=1, WB=3 * 4096, XB=16384)
G2 = dict(BK=32, NS=6, LAG=1, WB=4 * 4096, XB=8192)
G12_LDS = max(G1["NS"] * (G1["WB"] + G1["XB"]), G2["NS"] * (G2["WB"] + G2["XB"]))
G12_GRID = 256 if PF_G12 else 240


def gen_g12(a):
    name = "g12_kernel"
    kernel_begin(a, name)
    a(f"s_cmp_ge_u32 s2, {G12_GRID}")
    a("s_cbranch_scc1 g12_done")
    a(f"s_load_dwordx2 s[4:5], s[0:1], {A_WQKV}")
    a(f"s_load_dwordx4 s[8:11], s[0:1], {B_W1}")
    a(f"s_load_dwordx2 s[6:7], s[0:1], {D_WS}")
    a("v_and_b32 v1, 63, v0")
    a("v_lshrrev_b32 v2, 6, v0")
    a("s_and_b32 s30, s2, 7")
    a("v_readfirstlane_b32 s3, v2")
    a("s_lshr_b32 s31, s2, 3")
    a("s_waitcnt lgkmcnt(0)")
    a("s_cmp_ge_u32 s31, 30")
    a("s_cbranch_scc1 g12_pf")
    a("s_cmp_ge_u32 s31, 14")
    a("s_cbranch_scc1 g1_entry")
    g = G2
    STAGE = g["WB"] + g["XB"]
    NK = 2048 // g["BK"]
    a("s_mul_i32 s32, s30, 14")
    a("s_add_u32 s32, s32, s31")
    a("s_cmp_ge_u32 s32, 56")
    a("s_cselect_b32 s33, 4, 0")
    a("s_cselect_b32 s34, 56, 0")
    a("s_sub_u32 s32, s32, s34")
    a("s_and_b32 s34, s32, 3")
    a("s_add_u32 s33, s33, s34")
    a("s_lshr_b32 s32, s32, 2")
    a("s_cmp_ge_u32 s3, 4")
    a("s_cbranch_scc1 g2_prod")
    stamp(a, 0)
    make_srd(a, 12, 10, 0, 3584 * 2)
    make_srd(a, 16, 6, WS_U, SZ_U)
    a("s_and_b32 s35, s3, 1")
    a("s_lshr_b32 s36, s3, 1")
    ACC = 128
    a("v_lshrrev_b32 v2, 5, v1")
    a("v_lshlrev_b32 v2, 3, v2")
    a("s_lshl_b32 s37, s32, 9")
    a("s_lshl_b32 s38, s35, 8")
    a("s_add_u32 s37, s37, s38")
    for fb in range(4):
        for gg in range(4):
            a(f"buffer_load_dwordx2 {vr(8 + (fb * 4 + gg) * 2, 2)}, v2, s[12:15], s37 offen offset:{fb * 64 + gg * 16}")
    D2 = 2 * TD
    a("s_cmp_ge_u32 s3, 2")
    a("s_cbranch_scc1 g2_tx")
    make_srd(a, 52, 8, 0, 2048 * 3584 * 2)
    a("v_lshrrev_b32 v60, 4, v1")
    a("v_mul_u32_u24 v60, 7168, v60")
    a("v_and_b32 v61, 15, v1")
    a("v_lshl_add_u32 v60, v61, 5, v60")
    a("s_and_b32 s56, s33, 3")
    a("s_lshl_b32 s56, s56, 1")
    a("s_add_u32 s56, s56, s3")
    a(f"s_mul_i32 s56, s56, {4 * 7168}")
    a("s_lshl_b32 s57, s32, 9")
    a("s_add_u32 s56, s56, s57")
    a(f"s_mov_b32 s57, {32 * 7168}")
    a(f"s_add_u32 s56, s56, {g['NS'] * 32 * 7168}")
    a("s_branch g2_tdone")
    a.label("g2_tx")
    make_srd(a, 52, 6, WS_HT, SZ_HT)
    a("s_add_u32 s54, s33, 1")
    a("s_lshl_b32 s54, s54, 19")
    a("v_lshlrev_b32 v60, 4, v1")
    a("s_and_b32 s56, s32, 3")
    a("s_lshl_b32 s56, s56, 1")
    a("s_add_u32 s56, s56, s3")
    a("s_sub_u32 s56, s56, 2")
    a("s_lshl_b32 s56, s56, 10")
    a("s_lshl_b32 s57, s33, 19")
    a("s_add_u32 s56, s56, s57")
    a("s_mov_b32 s57, 8192")
    a(f"s_add_u32 s56, s56, {g['NS'] * 8192}")
    a.label("g2_tdone")
    for i in range(max(0, D2 - g['NS'])):
        for t in touch(60, 61):
            a(t)
    w_lane_laddr(a, 4, 1, False, 6, 7)
    a("s_lshl_b32 s38, s35, 13")
    a("v_add_u32 v4, s38, v4")
    a("v_xor_b32 v5, 64, v4")
    a("v_lshlrev_b32 v6, 4, v1")
    a("s_lshl_b32 s38, s36, 11")
    a(f"s_add_u32 s38, s38, {g['WB']}")
    a("v_add_u32 v6, s38, v6")
    a("s_mov_b32 s39, 0xffff0000")
    a(f"s_waitcnt vmcnt({max(0, D2 - g['NS'])})")
    for fb in range(4):
        for gg in range(4):
            for j in range(2):
                src = 8 + (fb * 4 + gg) * 2 + j
                for xi in range(2):
                    d = ACC + (fb * 2 + xi) * 16 + gg * 4 + 2 * j
                    a(f"v_lshlrev_b32 v{d}, 16, v{src}")
                    a(f"v_and_b32 v{d + 1}, s39, v{src}")
    form = dict(
        mfma=[(wi * 2 + xi, wi, xi, True) for wi in range(4) for xi in range(2)],
        wread=lambda wi, ks, r: (4 + (wi & 1), (wi >> 1) * 4096 + w_roff(ks, r, False)),
        xread=lambda xi, ks: (6, ks * 4096 + xi * 1024),
    )
    c = Consumer(a, 2, 1, 2, 4, 2, lambda st, wi: 8 + (st * 4 + wi) * 4, lambda st, xi: 40 + (st * 2 + xi) * 4,
                 lambda ai: ACC + ai * 16)
    stamp(a, 1)
    consumer_run(a, c, [(form, NK, [])], [4, 5, 6], 40, 42, 44, g["NS"], STAGE, "g2c", False, tch=touch(60, 61))
    stamp(a, 2)
    c1 = -2.0 * 1.4426950408889634 * 0.7978845608028654
    c2 = c1 * 0.044715
    a(f"s_mov_b32 s46, {f2u(c1):#x}")
    a(f"s_mov_b32 s47, {f2u(c1):#x}")
    a(f"s_mov_b32 s48, {f2u(c2):#x}")
    a(f"s_mov_b32 s49, {f2u(c2):#x}")
    a("s_mul_i32 s37, s33, 224")
    a("s_lshl_b32 s38, s32, 4")
    a("s_add_u32 s37, s37, s38")
    a("s_lshl_b32 s38, s35, 3")
    a("s_add_u32 s37, s37, s38")
    a("s_lshl_b32 s37, s37, 12")
    a("s_lshl_b32 s38, s36, 11")
    a("s_add_u32 s37, s37, s38")
    a("v_lshlrev_b32 v2, 4, v1")
    a("v_mov_b32 v4, s46")
    a("v_mov_b32 v5, s46")
    a("s_nop 7")
    a("s_nop 7")
    T = 8
    for fb in range(4):
        for xi in range(2):
            for t in range(2):
                b = ACC + (fb * 2 + xi) * 16 + t * 8
                tb = T + (((fb * 2 + xi) * 2 + t) & 1) * 24
                for p in range(4):
                    a(f"v_pk_mul_f32 {vr(tb + 2 * p, 2)}, {vr(b + 2 * p, 2)}, {vr(b + 2 * p, 2)}")
                for p in range(4):
                    a(f"v_pk_fma_f32 {vr(tb + 2 * p, 2)}, {vr(tb + 2 * p, 2)}, s[48:49], v[4:5]")
                for p in range(4):
                    a(f"v_pk_mul_f32 {vr(tb + 2 * p, 2)}, {vr(tb + 2 * p, 2)}, {vr(b + 2 * p, 2)}")
                for p in range(8):
                    a(f"v_exp_f32 v{tb + p}, v{tb + p}")
                for p in range(4):
                    a(f"v_pk_add_f32 {vr(tb + 2 * p, 2)}, {vr(tb + 2 * p, 2)}, 1.0 op_sel_hi:[1,0]")
                for p in range(8):
                    a(f"v_rcp_f32 v{tb + p}, v{tb + p}")
                for p in range(4):
                    a(f"v_pk_mul_f32 {vr(tb + 2 * p, 2)}, {vr(tb + 2 * p, 2)}, {vr(b + 2 * p, 2)}")
                for p in range(4):
                    a(f"v_cvt_pk_bf16_f32 v{tb + 8 + p}, v{tb + 2 * p}, v{tb + 2 * p + 1}")
                a(f"s_add_u32 s38, s37, {(fb * 2 + t) * 4096 + xi * 1024}")
                a(f"buffer_store_dwordx4 {vr(tb + 8, 4)}, v2, s[16:19], s38 offen")
    if STAMP:
        a("s_waitcnt vmcnt(0)")
    stamp(a, 3)
    stamp_store(a, 6, 1, 4)
    a("s_endpgm")
    a.label("g2_prod")
    a("s_sub_u32 s3, s3, 4")
    make_srd(a, 12, 8, 0, 2048 * 3584 * 2)
    make_srd(a, 16, 6, WS_HT, SZ_HT)
    ldw = 3584 * 2
    w_lane_goff(a, 4, 1, ldw, 2, 3)
    for cb in range(1, 4):
        a(f"v_add_u32 v{4 + cb}, {cb * 128}, v4")
    a("v_lshlrev_b32 v8, 4, v1")
    a(f"s_mul_i32 s35, s3, {8 * ldw}")
    a("s_lshl_b32 s36, s32, 9")
    a("s_add_u32 s35, s35, s36")
    a("s_lshl_b32 s36, s33, 19")
    a("s_lshl_b32 s37, s3, 11")
    a("s_add_u32 s36, s36, s37")
    a("s_lshl_b32 s38, s3, 10")
    a(f"s_add_u32 s39, s37, {g['WB']}")
    a("s_mov_b32 s40, 0")

    def issue2():
        for cb in range(4):
            if cb == 0:
                a("s_add_u32 m0, s40, s38")
            else:
                a("s_add_u32 m0, m0, 4096")
            a("s_nop 0")
            a(f"buffer_load_dwordx4 v{4 + cb}, s[12:15], s35 offen lds")
        a("s_add_u32 m0, s40, s39")
        a(f"s_add_u32 s35, s35, {g['BK'] * ldw}")
        a("buffer_load_dwordx4 v8, s[16:19], s36 offen lds")
        a("buffer_load_dwordx4 v8, s[16:19], s36 offen offset:1024 lds")
        a(f"s_add_u32 s36, s36, {g['XB']}")
        a(f"s_add_u32 s40, s40, {STAGE}")
        a(f"s_cmp_eq_u32 s40, {STAGE * g['NS']}")
        a("s_cselect_b32 s40, 0, s40")

    producer_run(a, issue2, 6, g["NS"], g["LAG"], NK, 44, "g2")
    a("s_endpgm")

    a.label("g1_entry")
    g = G1
    STAGE = g["WB"] + g["XB"]
    NK = 1024 // g["BK"]
    a("s_sub_u32 s31, s31, 14")
    a("s_and_b32 s32, s30, 3")
    a("s_lshl_b32 s32, s32, 2")
    a("s_and_b32 s33, s31, 3")
    a("s_add_u32 s32, s32, s33")
    a("s_lshr_b32 s33, s30, 2")
    a("s_lshl_b32 s33, s33, 2")
    a("s_lshr_b32 s34, s31, 2")
    a("s_add_u32 s33, s33, s34")
    a("s_cmp_ge_u32 s3, 4")
    a("s_cbranch_scc1 g1_prod")
    stamp(a, 0)
    make_srd(a, 16, 6, WS_QKV, SZ_QKV)
    a("s_and_b32 s35, s3, 1")
    a("s_lshr_b32 s36, s3, 1")
    D1 = (3 * TD) // 2
    a("s_cmp_ge_u32 s3, 2")
    a("s_cbranch_scc1 g1_tx")
    make_srd(a, 52, 4, 0, 1024 * 3072 * 2)
    a("v_lshrrev_b32 v3, 4, v1")
    a("v_mul_u32_u24 v3, 6144, v3")
    a("v_bfe_u32 v2, v1, 2, 2")
    a("v_min_u32 v2, 2, v2")
    a("v_lshl_add_u32 v3, v2, 11, v3")
    a("v_and_b32 v2, 3, v1")
    a("v_lshl_add_u32 v3, v2, 5, v3")
    a("s_and_b32 s56, s33, 3")
    a("s_lshl_b32 s56, s56, 1")
    a("s_add_u32 s56, s56, s3")
    a(f"s_mul_i32 s56, s56, {4 * 6144}")
    a("s_lshl_b32 s57, s32, 7")
    a("s_add_u32 s56, s56, s57")
    a(f"s_mov_b32 s57, {32 * 6144}")
    a(f"s_add_u32 s56, s56, {g['NS'] * 32 * 6144}")
    a("s_branch g1_tdone")
    a.label("g1_tx")
    make_srd(a, 52, 6, WS_XN, SZ_XN)
    a("s_add_u32 s54, s33, 1")
    a("s_lshl_b32 s54, s54, 19")
    a("v_lshlrev_b32 v3, 5, v1")
    a("s_and_b32 s56, s32, 3")
    a("s_lshl_b32 s56, s56, 1")
    a("s_add_u32 s56, s56, s3")
    a("s_sub_u32 s56, s56, 2")
    a("s_lshl_b32 s56, s56, 11")
    a("s_lshl_b32 s57, s33, 19")
    a("s_add_u32 s56, s56, s57")
    a("s_mov_b32 s57, 16384")
    a(f"s_add_u32 s56, s56, {g['NS'] * 16384}")
    a.label("g1_tdone")
    for i in range(max(0, D1 - g['NS'])):
        for t in touch(3, 2):
            a(t)
    w_lane_laddr(a, 4, 1, False, 6, 7)
    a("s_lshl_b32 s38, s35, 6")
    a("v_xor_b32 v4, s38, v4")
    a("v_lshlrev_b32 v6, 4, v1")
    a("s_lshl_b32 s38, s36, 12")
    a(f"s_add_u32 s38, s38, {g['WB']}")
    a("v_add_u32 v6, s38, v6")
    ACC = 64
    form = dict(
        mfma=[(wi * 4 + xi, wi, xi, wi < 2) for xi in range(4) for wi in range(3)],
        wread=lambda wi, ks, r: (4, wi * 4096 + w_roff(ks, r, False)),
        xread=lambda xi, ks: (6, ks * 8192 + xi * 1024),
    )
    c = Consumer(a, 2, 1, 2, 3, 4, lambda st, wi: 8 + (st * 3 + wi) * 4, lambda st, xi: 32 + (st * 4 + xi) * 4,
                 lambda ai: ACC + ai * 16)
    stamp(a, 1)
    consumer_run(a, c, [(form, NK, [])], [4, 6], 40, 42, 44, g["NS"], STAGE, "g1c", True, tch=touch(3, 2))
    stamp(a, 2)
    a("s_lshl_b32 s37, s32, 1")
    a("s_add_u32 s37, s37, s35")
    a("s_lshl_b32 s37, s37, 6")
    a("s_lshl_b32 s38, s33, 3")
    a("s_add_u32 s37, s37, s38")
    a("s_lshl_b32 s38, s36, 2")
    a("s_add_u32 s37, s37, s38")
    a("s_lshl_b32 s37, s37, 11")
    a("s_waitcnt vmcnt(0)")
    a("v_lshlrev_b32 v2, 4, v1")
    a("s_nop 7")
    a("s_nop 7")
    n = 0
    for xi in range(4):
        for wi in range(3):
            b = ACC + (wi * 4 + xi) * 16
            tb = 8 + (n % 6) * 8
            n += 1
            for p in range(8):
                a(f"v_cvt_pk_bf16_f32 v{tb + p}, v{b + 2 * p}, v{b + 2 * p + 1}")
            a(f"s_add_u32 s38, s37, {wi * 4 * MB + xi * 2048}")
            a(f"buffer_store_dwordx4 {vr(tb, 4)}, v2, s[16:19], s38 offen")
            a(f"buffer_store_dwordx4 {vr(tb + 4, 4)}, v2, s[16:19], s38 offen offset:1024")
    if STAMP:
        a("s_waitcnt vmcnt(0)")
    stamp(a, 3)
    stamp_store(a, 6, 1, 4)
    a("s_endpgm")
    a.label("g1_prod")
    a("s_sub_u32 s3, s3, 4")
    make_srd(a, 12, 4, 0, 1024 * 3072 * 2)
    make_srd(a, 16, 6, WS_XN, SZ_XN)
    ldw = 3072 * 2
    w_lane_goff(a, 4, 1, ldw, 2, 3)
    a("v_add_u32 v5, 2048, v4")
    a("v_add_u32 v6, 4096, v4")
    a("v_lshlrev_b32 v8, 4, v1")
    a(f"s_mul_i32 s35, s3, {8 * ldw}")
    a("s_lshl_b32 s36, s32, 7")
    a("s_add_u32 s35, s35, s36")
    a("s_lshl_b32 s36, s33, 19")
    a("s_lshl_b32 s37, s3, 12")
    a("s_add_u32 s36, s36, s37")
    a("s_lshl_b32 s38, s3, 10")
    a(f"s_add_u32 s39, s37, {g['WB']}")
    a("s_mov_b32 s40, 0")

    def issue1():
        for cb in range(3):
            if cb == 0:
                a("s_add_u32 m0, s40, s38")
            else:
                a("s_add_u32 m0, m0, 4096")
            a("s_nop 0")
            a(f"buffer_load_dwordx4 v{4 + cb}, s[12:15], s35 offen lds")
        a("s_add_u32 m0, s40, s39")
        a(f"s_add_u32 s35, s35, {g['BK'] * ldw}")
        for p in range(4):
            a(f"buffer_load_dwordx4 v8, s[16:19], s36 offen offset:{p * 1024} lds")
        a(f"s_add_u32 s36, s36, {g['XB']}")
        a(f"s_add_u32 s40, s40, {STAGE}")
        a(f"s_cmp_eq_u32 s40, {STAGE * g['NS']}")
        a("s_cselect_b32 s40, 0, s40")

    producer_run(a, issue1, 7, g["NS"], g["LAG"], NK, 44, "g1")
    a("s_endpgm")
    a.label("g12_pf")
    a(f"s_load_dwordx2 s[20:21], s[0:1], {A_WO}")
    a(f"s_load_dwordx2 s[22:23], s[0:1], {B_W2}")
    a("s_sub_u32 s32, s2, 240")
    a("s_lshl_b32 s32, s32, 3")
    a("s_add_u32 s32, s32, s3")
    a("s_lshl_b32 s32, s32, 13")
    a("v_lshlrev_b32 v2, 7, v1")
    make_srd(a, 12, 4, 0, 1024 * 3072 * 2)
    make_srd(a, 16, 8, 0, 2048 * 3584 * 2)
    a(f"s_add_u32 s33, s32, {PF_LN_QKV}")
    a(f"s_add_u32 s34, s32, {PF_LN_W1}")
    nq = -(-(1024 * 3072 * 2 - PF_LN_QKV) // MB)
    n1 = -(-(2048 * 3584 * 2 - PF_LN_W1) // MB)
    i1 = 0
    for i in range(max(nq, (n1 + 1) // 2)):
        if i < nq:
            a("buffer_load_dword v3, v2, s[12:15], s33 offen")
            a(f"s_add_u32 s33, s33, {MB}")
        for _ in range(2):
            if i1 < n1:
                a("buffer_load_dword v3, v2, s[16:19], s34 offen")
                a(f"s_add_u32 s34, s34, {MB}")
                i1 += 1
    a("s_waitcnt lgkmcnt(0)")
    make_srd(a, 12, 22, 0, 3584 * 2048 * 2)
    make_srd(a, 16, 20, 0, 1024 * 1024 * 2)
    a("s_mov_b32 s33, s32")
    for i in range(14):
        a("buffer_load_dword v3, v2, s[12:15], s33 offen")
        a(f"s_add_u32 s33, s33, {MB}")
    a("buffer_load_dword v3, v2, s[16:19], s32 offen")
    a(f"s_add_u32 s32, s32, {MB}")
    a("buffer_load_dword v3, v2, s[16:19], s32 offen")
    a.label("g12_done")
    a("s_endpgm")
    kernel_desc(a, name, 256)


ATT_LDS = 65536


def gen_att(a):
    name = "att_kernel"
    kernel_begin(a, name)
    a("s_cmp_ge_u32 s2, 256")
    a("s_cbranch_scc1 att_done")
    stamp(a, 0)
    a(f"s_load_dwordx2 s[6:7], s[0:1], {D_WS}")
    a("v_and_b32 v1, 63, v0")
    a("v_lshrrev_b32 v2, 6, v0")
    a("v_lshlrev_b32 v3, 4, v1")
    a("v_readfirstlane_b32 s3, v2")
    a("s_and_b32 s30, s2, 31")
    a("s_lshr_b32 s31, s2, 5")
    a("s_lshl_b32 s32, s30, 17")
    a("s_waitcnt lgkmcnt(0)")
    a("s_add_u32 s4, s6, s32")
    a("s_addc_u32 s5, s7, 0")
    make_srd(a, 8, 4, WS_QKV, 0x20000)
    make_srd(a, 12, 4, WS_QKV + 4 * MB, 0x20000)
    make_srd(a, 16, 4, WS_QKV + 8 * MB, 0x20000)
    make_srd(a, 20, 6, WS_O, SZ_O)
    a("s_lshl_b32 s33, s31, 3")
    a("s_lshl_b32 s34, s3, 1")
    a("s_add_u32 s34, s34, s33")
    a("s_sub_u32 s34, s34, 8")
    a("s_max_i32 s34, s34, 0")
    a("s_lshl_b32 s34, s34, 11")
    a("s_lshl_b32 m0, s3, 12")
    a("s_add_u32 s35, s33, s3")
    for p in range(4):
        a(f"buffer_load_dwordx4 v3, s[12:15], s34 offen offset:{p * 1024} lds")
    a("s_add_u32 m0, m0, 0x8000")
    a("s_lshl_b32 s36, s35, 11")
    for p in range(4):
        a(f"buffer_load_dwordx4 v3, s[16:19], s34 offen offset:{p * 1024} lds")
    Q = 8
    a(f"buffer_load_dwordx4 {vr(Q, 4)}, v3, s[8:11], s36 offen")
    a(f"buffer_load_dwordx4 {vr(Q + 4, 4)}, v3, s[8:11], s36 offen offset:1024")
    a("s_lshl_b32 s37, s3, 11")
    a("v_add_u32 v4, s37, v3")
    a("v_and_b32 v5, 31, v1")
    a("v_lshrrev_b32 v6, 5, v1")
    a("v_lshlrev_b32 v6, 2, v6")
    a("v_sub_u32 v5, v5, v6")
    a("v_mov_b32 v7, 0xff800000")
    S = 64
    KF = 16
    a("s_waitcnt vmcnt(0)")
    stamp(a, 1)
    a("s_barrier")
    a(f"ds_read_b128 {vr(KF, 4)}, v4")
    a(f"ds_read_b128 {vr(KF + 4, 4)}, v4 offset:1024")
    for j in range(9):
        kf = KF + (j & 1) * 8
        if j < 8:
            nf = KF + ((j + 1) & 1) * 8
            a(f"ds_read_b128 {vr(nf, 4)}, v4 offset:{(j + 1) * 2048}")
            a(f"ds_read_b128 {vr(nf + 4, 4)}, v4 offset:{(j + 1) * 2048 + 1024}")
            a("s_waitcnt lgkmcnt(2)")
        else:
            a("s_waitcnt lgkmcnt(0)")
        sj = vr(S + 16 * j, 16)
        a(f"v_mfma_f32_32x32x16_bf16 {sj}, {vr(kf, 4)}, {vr(Q, 4)}, 0")
        a(f"v_mfma_f32_32x32x16_bf16 {sj}, {vr(kf + 4, 4)}, {vr(Q + 4, 4)}, {sj}")
    VF = 16

    def vread(j):
        b = VF + (j & 3) * 8
        a(f"ds_read_b128 {vr(b, 4)}, v4 offset:{0x8000 + j * 2048}")
        a(f"ds_read_b128 {vr(b + 4, 4)}, v4 offset:{0x8000 + j * 2048 + 1024}")

    a("s_nop 7")
    a("s_nop 7")
    for j in range(4):
        vread(j)
    for i in range(16):
        b = (i >> 2) * 8 + (i & 3)
        a(f"v_cmp_gt_i32 vcc, {b}, v5")
        a("s_nop 1")
        a(f"v_cndmask_b32 v{S + i}, v7, v{S + i}, vcc")
        a(f"v_cndmask_b32 v{S + 128 + i}, v{S + 128 + i}, v7, vcc")
    a("s_cmp_ge_u32 s35, 8")
    a("s_cbranch_scc1 att_allvalid")
    for j in range(8):
        a(f"s_cmp_ge_u32 s35, {8 - j}")
        a("s_cbranch_scc1 att_allvalid")
        for i in range(16):
            a(f"v_mov_b32 v{S + 16 * j + i}, v7")
    a.label("att_allvalid")
    stamp(a, 2)
    M0, M1 = 48, 49
    a(f"v_max_f32 v{M0}, v{S}, v{S + 1}")
    a(f"v_max_f32 v{M1}, v{S + 2}, v{S + 3}")
    for i in range(4, 144, 4):
        a(f"v_max3_f32 v{M0}, v{M0}, v{S + i}, v{S + i + 1}")
        a(f"v_max3_f32 v{M1}, v{M1}, v{S + i + 2}, v{S + i + 3}")
    a(f"v_max_f32 v{M0}, v{M0}, v{M1}")
    a(f"v_mov_b32 v{M1}, v{M0}")
    a("s_nop 1")
    a(f"v_permlane32_swap_b32 v{M0}, v{M1}")
    a("s_nop 1")
    a(f"v_max_f32 v{M0}, v{M0}, v{M1}")
    sc = (32 ** -0.5) * 1.4426950408889634
    a(f"s_mov_b32 s38, {f2u(sc):#x}")
    a(f"v_mul_f32 v{M0}, s38, v{M0}")
    stamp(a, 3)
    L0, L1 = 50, 51
    a(f"v_mov_b32 v{L0}, 0")
    a(f"v_mov_b32 v{L1}, 0")
    O = 208
    P = 224
    for j in range(9):
        sb = S + 16 * j
        pb = P + (j & 1) * 8
        for i in range(16):
            a(f"v_fma_f32 v{sb + i}, v{sb + i}, s38, -v{M0}")
        for i in range(16):
            a(f"v_exp_f32 v{sb + i}, v{sb + i}")
        for i in range(0, 16, 2):
            a(f"v_add_f32 v{L0}, v{L0}, v{sb + i}")
            a(f"v_add_f32 v{L1}, v{L1}, v{sb + i + 1}")
        for i in range(8):
            a(f"v_cvt_pk_bf16_f32 v{pb + i}, v{sb + 2 * i}, v{sb + 2 * i + 1}")
        vb = VF + (j & 3) * 8
        rem = min(3, 8 - j)
        a(f"s_waitcnt lgkmcnt({2 * rem})")
        a("s_nop 0")
        a(f"v_mfma_f32_32x32x16_bf16 {vr(O, 16)}, {vr(vb, 4)}, {vr(pb, 4)}, {'0' if j == 0 else vr(O, 16)}")
        a(f"v_mfma_f32_32x32x16_bf16 {vr(O, 16)}, {vr(vb + 4, 4)}, {vr(pb + 4, 4)}, {vr(O, 16)}")
        if j + 4 < 9:
            vread(j + 4)
    a(f"v_add_f32 v{L0}, v{L0}, v{L1}")
    a(f"v_mov_b32 v{L1}, v{L0}")
    a("s_nop 1")
    a(f"v_permlane32_swap_b32 v{L0}, v{L1}")
    a("s_nop 1")
    a(f"v_add_f32 v{L0}, v{L0}, v{L1}")
    a(f"v_rcp_f32 v{L0}, v{L0}")
    a("s_lshr_b32 s39, s35, 2")
    a("s_lshl_b32 s39, s39, 6")
    a("s_lshl_b32 s40, s30, 1")
    a("s_add_u32 s39, s39, s40")
    a("s_lshl_b32 s39, s39, 12")
    a("s_and_b32 s40, s35, 3")
    a("s_lshl_b32 s40, s40, 10")
    a("s_add_u32 s39, s39, s40")
    a("s_add_u32 s40, s39, 4096")
    a("s_nop 7")
    for i in range(16):
        a(f"v_mul_f32 v{O + i}, v{O + i}, v{L0}")
    for i in range(8):
        a(f"v_cvt_pk_bf16_f32 v{P + i}, v{O + 2 * i}, v{O + 2 * i + 1}")
    a(f"buffer_store_dwordx4 {vr(P, 4)}, v3, s[20:23], s39 offen")
    a(f"buffer_store_dwordx4 {vr(P + 4, 4)}, v3, s[20:23], s40 offen")
    stamp(a, 4)
    if STAMP:
        a("s_waitcnt vmcnt(0)")
    stamp(a, 5)
    stamp_store(a, 6, 2, 6)
    a.label("att_done")
    a("s_endpgm")
    kernel_desc(a, name, 240)


G3 = dict(BK=64, NS=5, LAG=1, WB=16384, XB=16384)
G3_LDS = G3["NS"] * (G3["WB"] + G3["XB"])
G3_GRID = 128


def gen_g3(a):
    name = "g3_kernel"
    g = G3
    STAGE = g["WB"] + g["XB"]
    NKY, NKO = 3584 // 64, 1024 // 64
    kernel_begin(a, name)
    a(f"s_cmp_ge_u32 s2, {G3_GRID}")
    a("s_cbranch_scc1 g3_done")
    a(f"s_load_dwordx2 s[4:5], s[0:1], {A_X}")
    a(f"s_load_dwordx2 s[6:7], s[0:1], {A_WO}")
    a(f"s_load_dwordx4 s[8:11], s[0:1], {B_W2}")
    a(f"s_load_dwordx2 s[24:25], s[0:1], {D_OUT}")
    a(f"s_load_dwordx2 s[26:27], s[0:1], {D_WS}")
    a("v_and_b32 v1, 63, v0")
    a("v_lshrrev_b32 v2, 6, v0")
    a("s_and_b32 s30, s2, 7")
    a("v_readfirstlane_b32 s3, v2")
    a("s_lshr_b32 s31, s2, 3")
    a("s_and_b32 s32, s30, 1")
    a("s_lshl_b32 s32, s32, 2")
    a("s_and_b32 s33, s31, 3")
    a("s_add_u32 s32, s32, s33")
    a("s_lshr_b32 s33, s30, 1")
    a("s_lshl_b32 s33, s33, 2")
    a("s_lshr_b32 s34, s31, 2")
    a("s_add_u32 s33, s33, s34")
    a("s_waitcnt lgkmcnt(0)")
    a("s_cmp_ge_u32 s3, 4")
    a("s_cbranch_scc1 g3_prod")
    stamp(a, 0)
    make_srd(a, 12, 4, 0, 4 * MB)
    make_srd(a, 16, 10, 0, 4096)
    make_srd(a, 20, 24, 0, 4 * MB)
    a("s_and_b32 s35, s3, 1")
    a("s_lshr_b32 s36, s3, 1")
    ACC = 128
    a("v_and_b32 v2, 31, v1")
    a("v_lshrrev_b32 v3, 5, v1")
    a("v_lshlrev_b32 v7, 11, v2")
    a("v_lshl_add_u32 v8, v3, 3, v7")
    a("v_lshl_add_u32 v7, v3, 4, v7")
    a("v_lshlrev_b32 v2, 1, v2")
    a("s_lshl_b32 s37, s33, 7")
    a("s_lshl_b32 s38, s36, 6")
    a("s_add_u32 s37, s37, s38")
    a("s_lshl_b32 s39, s37, 1")
    a("s_lshl_b32 s37, s37, 11")
    a("s_lshl_b32 s38, s32, 8")
    a("s_add_u32 s37, s37, s38")
    a("s_lshl_b32 s38, s35, 7")
    a("s_add_u32 s37, s37, s38")
    a("s_add_u32 s38, s37, 0x10000")
    XT = 64
    for di in range(2):
        for si in range(2):
            for gg in range(4):
                a(f"buffer_load_dwordx2 {vr(XT + ((di * 2 + si) * 4 + gg) * 2, 2)}, v8, s[12:15], s{37 + si} offen offset:{di * 64 + gg * 16}")
    a("buffer_load_ushort v96, v2, s[16:19], s39 offen")
    a("buffer_load_ushort v97, v2, s[16:19], s39 offen offset:64")
    D3 = TD

    def g3_touch_setup(b, part, tagx):
        ld = 4096 if part == "Y" else 2048
        b("s_cmp_ge_u32 s3, 2")
        b(f"s_cbranch_scc1 g3_tx{tagx}")
        if part == "Y":
            make_srd(b, 52, 8, 0, 3584 * 2048 * 2)
        else:
            make_srd(b, 52, 6, 0, 1024 * 1024 * 2)
        b("v_lshrrev_b32 v100, 3, v1")
        b(f"v_mul_u32_u24 v100, {ld}, v100")
        b("v_and_b32 v102, 7, v1")
        b("v_lshl_add_u32 v100, v102, 5, v100")
        b(f"s_and_b32 s56, {'s32' if part == 'Y' else 's33'}, 3")
        b("s_lshl_b32 s56, s56, 1")
        b("s_add_u32 s56, s56, s3")
        b(f"s_mul_i32 s56, s56, {8 * ld}")
        b(f"s_lshl_b32 s57, {'s33' if part == 'Y' else 's32'}, 8")
        b("s_add_u32 s56, s56, s57")
        b(f"s_mov_b32 s57, {64 * ld}")
        if part == "Y":
            b(f"s_add_u32 s56, s56, {g['NS'] * 64 * ld}")
        b(f"s_branch g3_tdone{tagx}")
        b.label(f"g3_tx{tagx}")
        if part == "Y":
            make_srd(b, 52, 26, WS_U, SZ_U)
            b(f"s_mul_i32 s57, s32, {224 * 4096}")
            b(f"s_add_u32 s54, s57, {224 * 4096}")
        else:
            make_srd(b, 52, 26, WS_O, SZ_O)
            b("s_lshl_b32 s57, s33, 18")
            b("s_add_u32 s54, s57, 0x40000")
        b("v_lshlrev_b32 v100, 5, v1")
        b(f"s_and_b32 s56, {'s33' if part == 'Y' else 's32'}, 3")
        b("s_lshl_b32 s56, s56, 1")
        b("s_add_u32 s56, s56, s3")
        b("s_sub_u32 s56, s56, 2")
        b("s_lshl_b32 s56, s56, 11")
        b("s_add_u32 s56, s56, s57")
        b("s_mov_b32 s57, 16384")
        if part == "Y":
            b(f"s_add_u32 s56, s56, {g['NS'] * 16384}")
        b.label(f"g3_tdone{tagx}")

    g3_touch_setup(a, "Y", 0)
    for i in range(max(0, D3 - g['NS'])):
        for t in touch(100, 101):
            a(t)
    w_lane_laddr(a, 9, 1, True, 2, 3)
    a("v_lshlrev_b32 v10, 4, v1")
    a(f"v_add_u32 v10, {g['WB']}, v10")
    a("s_lshl_b32 s46, s36, 13")
    a("s_lshl_b32 s47, s35, 11")
    a("s_lshl_b32 s48, s35, 13")
    a("s_lshl_b32 s49, s36, 11")
    a("v_add_u32 v4, s46, v9")
    a("v_xor_b32 v5, 64, v4")
    a("v_add_u32 v6, s47, v10")
    a("s_sub_u32 s48, s48, s46")
    a("s_sub_u32 s49, s49, s47")
    a("s_mov_b32 s39, 0xffff0000")
    a(f"s_waitcnt vmcnt({max(0, D3 - g['NS'])})")
    a("v_lshlrev_b32 v96, 16, v96")
    a("v_lshlrev_b32 v97, 16, v97")
    for di in range(2):
        for si in range(2):
            for gg in range(4):
                for j in range(2):
                    src = XT + ((di * 2 + si) * 4 + gg) * 2 + j
                    d = ACC + (di * 2 + si) * 16 + gg * 4 + 2 * j
                    a(f"v_lshlrev_b32 v{d}, 16, v{src}")
                    a(f"v_and_b32 v{d + 1}, s39, v{src}")
                    a(f"v_add_f32 v{d}, v{d}, v{96 + si}")
                    a(f"v_add_f32 v{d + 1}, v{d + 1}, v{96 + si}")
    wread = lambda wi, ks, r: (4 + wi, w_roff(ks, r, True))
    xread = lambda xi, ks: (6, ks * 4096 + xi * 1024)
    formY = dict(mfma=[(di * 2 + si, si, di, False) for (di, si) in ((0, 0), (1, 0), (1, 1), (0, 1))], wread=wread, xread=xread)
    formO = dict(mfma=[(di * 2 + si, di, si, True) for (di, si) in ((0, 0), (0, 1), (1, 1), (1, 0))], wread=wread, xread=xread)
    c = Consumer(a, 4, 2, 4, 2, 2, lambda st, wi: 16 + (st * 4 + wi) * 4, lambda st, xi: 16 + (st * 4 + 2 + xi) * 4,
                 lambda ai: ACC + ai * 16)
    sw = ["v_add_u32 v4, s48, v4", "v_add_u32 v5, s48, v5", "v_add_u32 v6, s49, v6"]
    stamp(a, 1)
    tb_ = Asm()
    g3_touch_setup(tb_, "O", 1)
    DD = max(D3, g['NS'])
    consumer_run(a, c, [(formY, NKY - DD, []), (formY, DD, [x.strip() for x in tb_.L]), (formO, NKO, sw)], [4, 5, 6], 40, 42, 44, g["NS"], STAGE, "g3c", False, tch=touch(100, 101))
    stamp(a, 2)
    a("s_nop 7")
    a("s_nop 7")
    n = 0
    for di in range(2):
        for si in range(2):
            b = ACC + (di * 2 + si) * 16
            tb = 16 + n * 8
            n += 1
            for p in range(8):
                a(f"v_cvt_pk_bf16_f32 v{tb + p}, v{b + 2 * p}, v{b + 2 * p + 1}")
            a("s_nop 1")
            for q in range(2):
                a(f"v_permlane32_swap_b32 v{tb + 4 * q}, v{tb + 4 * q + 2}")
                a(f"v_permlane32_swap_b32 v{tb + 4 * q + 1}, v{tb + 4 * q + 3}")
            a("s_nop 1")
            for q in range(2):
                a(f"buffer_store_dwordx4 {vr(tb + 4 * q, 4)}, v7, s[20:23], s{37 + si} offen offset:{di * 64 + q * 32}")
    if STAMP:
        a("s_waitcnt vmcnt(0)")
    stamp(a, 3)
    stamp_store(a, 26, 3, 4)
    a("s_endpgm")
    a.label("g3_prod")
    a("s_sub_u32 s3, s3, 4")
    make_srd(a, 12, 8, 0, 3584 * 2048 * 2)
    make_srd(a, 16, 26, WS_U, SZ_U)
    ldY, ldO = 4096, 2048
    w_lane_goff(a, 4, 1, ldY, 2, 3)
    a("v_add_u32 v5, 128, v4")
    w_lane_goff(a, 6, 1, ldO, 2, 3)
    a("v_add_u32 v7, 128, v6")
    a("v_lshlrev_b32 v8, 4, v1")
    a(f"s_mul_i32 s35, s3, {16 * ldY}")
    a("s_lshl_b32 s36, s33, 8")
    a("s_add_u32 s35, s35, s36")
    a(f"s_mul_i32 s36, s32, {224 * 4096}")
    a("s_lshl_b32 s37, s3, 12")
    a("s_add_u32 s36, s36, s37")
    a("s_lshl_b32 s38, s3, 11")
    a(f"s_add_u32 s39, s37, {g['WB']}")
    a("s_mov_b32 s40, 0")
    a(f"s_mov_b32 s41, {8 * ldY}")
    a(f"s_mov_b32 s42, {64 * ldY}")

    def issue3():
        a("s_add_u32 m0, s40, s38")
        a("s_add_u32 s43, s35, s41")
        a("buffer_load_dwordx4 v4, s[12:15], s35 offen lds")
        a("s_add_u32 m0, m0, 1024")
        a("s_nop 0")
        a("buffer_load_dwordx4 v4, s[12:15], s43 offen lds")
        a("s_add_u32 m0, m0, 8192")
        a("s_nop 0")
        a("buffer_load_dwordx4 v5, s[12:15], s43 offen lds")
        a("s_sub_u32 m0, m0, 1024")
        a("s_nop 0")
        a("buffer_load_dwordx4 v5, s[12:15], s35 offen lds")
        a("s_add_u32 m0, s40, s39")
        a("s_add_u32 s35, s35, s42")
        for p in range(4):
            a(f"buffer_load_dwordx4 v8, s[16:19], s36 offen offset:{p * 1024} lds")
        a(f"s_add_u32 s36, s36, {g['XB']}")
        a(f"s_add_u32 s40, s40, {STAGE}")
        a(f"s_cmp_eq_u32 s40, {STAGE * g['NS']}")
        a("s_cselect_b32 s40, 0, s40")

    b = Asm()
    make_srd(b, 12, 6, 0, 1024 * 1024 * 2)
    make_srd(b, 16, 26, WS_O, SZ_O)
    b("v_mov_b32 v4, v6")
    b("v_mov_b32 v5, v7")
    b(f"s_mul_i32 s35, s3, {16 * ldO}")
    b("s_lshl_b32 s36, s32, 8")
    b("s_add_u32 s35, s35, s36")
    b("s_lshl_b32 s36, s33, 18")
    b("s_add_u32 s36, s36, s37")
    b(f"s_mov_b32 s41, {8 * ldO}")
    b(f"s_mov_b32 s42, {64 * ldO}")
    code = [s.strip() for s in b.L]
    producer_run(a, issue3, 8, g["NS"], g["LAG"], NKY + NKO, 44, "g3", switch=(NKY, code))
    a.label("g3_done")
    a("s_endpgm")
    kernel_desc(a, name, 256)


HEADER = open("cdna_kernels/" + NAME + ".s.ref").read().split("; Override launch")[0]


def main(out):
    a = Asm()
    a.raw(HEADER.rstrip("\n"))
    a.raw(f"; @launch kernel=ln_kernel grid=(256,1,1) block=(512,1,1) lds={LN_LDS}")
    a.raw(f"; @launch kernel=g12_kernel grid=({G12_GRID},1,1) block=(512,1,1) lds={G12_LDS}")
    a.raw(f"; @launch kernel=att_kernel grid=(256,1,1) block=(512,1,1) lds={ATT_LDS}")
    a.raw(f"; @launch kernel=g3_kernel grid=({G3_GRID},1,1) block=(512,1,1) lds={G3_LDS}")
    a.raw('.amdgcn_target "amdgcn-amd-amdhsa--gfx950"')
    gen_ln(a)
    a.gemm = True
    gen_g12(a)
    a.gemm = False
    gen_att(a)
    a.gemm = True
    gen_g3(a)
    open(out, "w").write(a.text())


if __name__ == "__main__":
    main(sys.argv[1] if len(sys.argv) > 1 else "cdna_kernels/" + NAME + ".s")
```

```python
import sys, struct, os

NAME = "parallel_sum__sliding_block__mixer_token_mlp__prompt"
MB = 1 << 20
WS_XN, WS_HT, WS_KV, WS_U, WS_O, WS_EX, WS_FLG = 0, 4 * MB, 8 * MB, 20 * MB, 28 * MB, 32 * MB, 44 * MB
SZ_XN, SZ_HT, SZ_KV, SZ_U, SZ_O, SZ_EX, SZ_FLG = 4 * MB, 4 * MB, 8 * MB, 8 * 112 * 8192, 4 * MB, 8 * MB, 65536
FLG_K3 = 16384
A_X, A_WQKV, A_WO, B_X, B_W1, B_B1, B_W2, B_B2, D_OUT, D_DBG, D_WS = [8 * i for i in range(11)]
ABL = os.environ.get("ABL", "").split(",")
STAMP = "stamp" in ABL
WS_STAMP = 64 * MB
SPIN_MAX = 200000


def env(k, d):
    return type(d)(os.environ.get(k, d))


def f2u(x):
    return struct.unpack("<I", struct.pack("<f", x))[0]


class Asm:
    def __init__(self):
        self.L = []

    def __call__(self, s):
        if "noload" in ABL and s.endswith("offen lds") or "noload" in ABL and s.endswith(" lds") and "sc1" not in s:
            return
        if "noread" in ABL and getattr(self, "gemm", False) and (s.startswith("ds_read") or s.startswith("s_waitcnt lgkm")):
            return
        self.L.append("    " + s)

    def label(self, s):
        self.L.append(s + ":")

    def raw(self, s):
        self.L.append(s)

    def text(self):
        return "\n".join(self.L) + "\n"

    def lines(self):
        return [x.strip() for x in self.L]


def vr(b, n):
    return f"v[{b}:{b + n - 1}]"


def kernel_begin(a, name):
    a.raw(".text")
    a.raw(f".globl {name}")
    a.raw(".p2align 8")
    a.raw(f".type {name},@function")
    a.label(name)


def kernel_desc(a, name, vgpr, sgpr=102):
    acc = (vgpr + 3) // 4 * 4
    a.raw('.section .rodata,"a"')
    a.raw(".p2align 6")
    a.raw(f".amdhsa_kernel {name}")
    a.raw(f"  .amdhsa_next_free_vgpr {vgpr}")
    a.raw(f"  .amdhsa_next_free_sgpr {sgpr}")
    a.raw(f"  .amdhsa_accum_offset {acc}")
    a.raw("  .amdhsa_group_segment_fixed_size 0")
    a.raw("  .amdhsa_kernarg_size 88")
    a.raw("  .amdhsa_user_sgpr_count 2")
    a.raw("  .amdhsa_user_sgpr_kernarg_segment_ptr 1")
    a.raw("  .amdhsa_system_sgpr_workgroup_id_x 1")
    a.raw("  .amdhsa_float_denorm_mode_32 3")
    a.raw(".end_amdhsa_kernel")


def make_srd(a, d, base, off, size):
    if off:
        a(f"s_add_u32 s{d}, s{base}, {off:#x}")
        a(f"s_addc_u32 s{d + 1}, s{base + 1}, 0")
    else:
        a(f"s_mov_b32 s{d}, s{base}")
        a(f"s_mov_b32 s{d + 1}, s{base + 1}")
    a(f"s_mov_b32 s{d + 2}, {size:#x}")
    a(f"s_mov_b32 s{d + 3}, 0x00020000")


def stamp(a, i):
    if not STAMP:
        return
    a(f"s_memtime s[{64 + 4 * i}:{65 + 4 * i}]")
    a(f"s_memrealtime s[{66 + 4 * i}:{67 + 4 * i}]")
    a("s_waitcnt lgkmcnt(0)")


def stamp_store(a, wsb, kid, n, wave="s3"):
    if not STAMP:
        return
    make_srd(a, 96, wsb, WS_STAMP, 16 * MB)
    a("s_lshl_b32 s100, s2, 3")
    a(f"s_add_u32 s100, s100, {wave}")
    a(f"s_add_u32 s100, s100, {kid * 4096}")
    a("s_lshl_b32 s100, s100, 7")
    a("v_mov_b32 v0, 0")
    for i in range(n):
        for j in range(4):
            a(f"v_mov_b32 v{4 + j}, s{64 + 4 * i + j}")
        a(f"buffer_store_dwordx4 v[4:7], v0, s[96:99], s100 offen offset:{16 * i}")
        a("s_nop 2")


PF_LN_QKV = int(env("PF_QKV", 6.0) * MB) // 8192 * 8192
PF_LN_W1 = int(env("PF_W1", 14.0) * MB) // 8192 * 8192
LN_RSA = 2048 + 16
LN_RSB = 2048 + 64
LN_OFFB = 8 * LN_RSA
LN_LDS = LN_OFFB + 8 * LN_RSB


def wave_reduce(a, regs):
    steps = ["row_shr:1 row_mask:0xf bank_mask:0xf bound_ctrl:0",
             "row_shr:2 row_mask:0xf bank_mask:0xf bound_ctrl:0",
             "row_shr:4 row_mask:0xf bank_mask:0xf bound_ctrl:0",
             "row_shr:8 row_mask:0xf bank_mask:0xf bound_ctrl:0",
             "row_bcast:15 row_mask:0xa bank_mask:0xf",
             "row_bcast:31 row_mask:0xc bank_mask:0xf"]
    for st in steps:
        a("s_nop 1")
        for r in regs:
            a(f"v_add_f32_dpp v{r}, v{r}, v{r} {st}")


def round_bf(a, r):
    a(f"v_cvt_pk_bf16_f32 v{r}, v{r}, v{r}")
    a(f"v_lshlrev_b32 v{r}, 16, v{r}")


def gen_ln(a):
    name = "ln_kernel"
    kernel_begin(a, name)
    a("s_cmp_ge_u32 s2, 256")
    a("s_cbranch_scc1 ln_done")
    stamp(a, 0)
    a(f"s_load_dwordx4 s[4:7], s[0:1], {A_X}")
    a(f"s_load_dwordx2 s[30:31], s[0:1], {D_WS}")
    a(f"s_load_dwordx2 s[32:33], s[0:1], {B_W1}")
    a("v_and_b32 v1, 63, v0")
    a("v_lshrrev_b32 v2, 6, v0")
    a("v_lshlrev_b32 v3, 4, v1")
    a("v_readfirstlane_b32 s3, v2")
    a("s_lshl_b32 s20, s2, 3")
    a("s_add_u32 s20, s20, s3")
    a("s_lshl_b32 s21, s20, 11")
    a("s_waitcnt lgkmcnt(0)")
    make_srd(a, 8, 4, 0, 4 * MB)
    a("buffer_load_dwordx4 v[8:11], v3, s[8:11], s21 offen")
    a("buffer_load_dwordx4 v[12:15], v3, s[8:11], s21 offen offset:1024")
    npf = 0
    a("v_lshlrev_b32 v60, 7, v1")
    a("s_lshl_b32 s34, s20, 13")
    if PF_LN_QKV:
        make_srd(a, 36, 6, 0, PF_LN_QKV)
        a("buffer_load_dword v61, v60, s[36:39], s34 offen")
        npf += 1
    if PF_LN_W1:
        make_srd(a, 40, 32, 0, PF_LN_W1)
        a("buffer_load_dword v62, v60, s[40:43], s34 offen")
        npf += 1
    make_srd(a, 12, 30, WS_XN, SZ_XN)
    make_srd(a, 16, 30, WS_HT, SZ_HT)
    make_srd(a, 44, 30, WS_FLG, SZ_FLG)
    a("s_cmp_lg_u32 s3, 0")
    a("s_cbranch_scc1 ln_noflag")
    a("v_lshlrev_b32 v4, 2, v1")
    a("v_mov_b32 v5, 0")
    a("s_lshl_b32 s35, s2, 8")
    a("buffer_store_dword v5, v4, s[44:47], s35 offen")
    a(f"s_waitcnt vmcnt({npf + 1})")
    a.label("ln_noflag")
    a("s_mov_b32 s22, 0xffff0000")
    a(f"s_mov_b32 s23, {f2u(1.0 / 1024):#x}")
    a(f"s_mov_b32 s24, {f2u(1e-5):#x}")
    X = 16
    a("s_cmp_eq_u32 s3, 0")
    a("s_cbranch_scc1 ln_loaded")
    a(f"s_waitcnt vmcnt({npf})")
    a.label("ln_loaded")
    stamp(a, 1)
    for i in range(8):
        a(f"v_lshlrev_b32 v{X + 2 * i}, 16, v{8 + i}")
        a(f"v_and_b32 v{X + 2 * i + 1}, s22, v{8 + i}")
    a(f"v_add_f32 v4, v{X}, v{X + 1}")
    a(f"v_add_f32 v5, v{X + 2}, v{X + 3}")
    for i in range(4, 16, 2):
        a(f"v_add_f32 v4, v4, v{X + i}")
        a(f"v_add_f32 v5, v5, v{X + i + 1}")
    a("v_add_f32 v4, v4, v5")
    wave_reduce(a, [4])
    a("s_nop 1")
    a("v_readlane_b32 s25, v4, 63")
    a("s_nop 1")
    a("v_mov_b32 v6, s23")
    a("v_mul_f32 v6, s25, v6")
    D = 32
    for i in range(16):
        a(f"v_sub_f32 v{D + i}, v{X + i}, v6")
    a(f"v_mul_f32 v4, v{D}, v{D}")
    a(f"v_mul_f32 v5, v{D + 1}, v{D + 1}")
    for i in range(2, 16, 2):
        a(f"v_fmac_f32 v4, v{D + i}, v{D + i}")
        a(f"v_fmac_f32 v5, v{D + i + 1}, v{D + i + 1}")
    a("v_add_f32 v4, v4, v5")
    wave_reduce(a, [4])
    a("s_nop 1")
    a("v_readlane_b32 s25, v4, 63")
    round_bf(a, 6)
    a("v_mov_b32 v7, s23")
    a("v_mul_f32 v7, s25, v7")

    def finish(src, dst_pk, mean, var, unpack):
        round_bf(a, var)
        a(f"v_add_f32 v{var}, s24, v{var}")
        round_bf(a, var)
        a(f"v_sqrt_f32 v{var}, v{var}")
        a("s_nop 0")
        round_bf(a, var)
        a(f"v_rcp_f32 v48, v{var}")
        for i in range(16):
            a(f"v_sub_f32 v{D + i}, v{src + i}, v{mean}")
        for i in range(8):
            a(f"v_cvt_pk_bf16_f32 v{dst_pk + i}, v{D + 2 * i}, v{D + 2 * i + 1}")
        for i in range(8):
            a(f"v_lshlrev_b32 v{D + 2 * i}, 16, v{dst_pk + i}")
            a(f"v_and_b32 v{D + 2 * i + 1}, s22, v{dst_pk + i}")
        for i in range(16):
            a(f"v_mul_f32 v{src + i}, v{D + i}, v48")
        for i in range(16):
            a(f"v_fma_f32 v{D + i}, -v{src + i}, v{var}, v{D + i}")
        for i in range(16):
            a(f"v_fmac_f32 v{src + i}, v{D + i}, v48")
        for i in range(8):
            a(f"v_cvt_pk_bf16_f32 v{dst_pk + i}, v{src + 2 * i}, v{src + 2 * i + 1}")
        if unpack:
            for i in range(8):
                a(f"v_lshlrev_b32 v{src + 2 * i}, 16, v{dst_pk + i}")
                a(f"v_and_b32 v{src + 2 * i + 1}, s22, v{dst_pk + i}")

    finish(X, 8, 6, 7, True)
    a(f"s_mul_i32 s26, s3, {LN_RSA}")
    a("v_add_u32 v50, s26, v3")
    a("ds_write_b128 v50, v[8:11]")
    a("ds_write_b128 v50, v[12:15] offset:1024")
    a(f"v_add_f32 v4, v{X}, v{X + 1}")
    a(f"v_mul_f32 v5, v{X}, v{X}")
    a(f"v_fmac_f32 v5, v{X + 1}, v{X + 1}")
    for i in range(2, 16):
        a(f"v_add_f32 v4, v4, v{X + i}")
        a(f"v_fmac_f32 v5, v{X + i}, v{X + i}")
    wave_reduce(a, [4, 5])
    a("s_nop 1")
    a("v_readlane_b32 s25, v4, 63")
    a("v_readlane_b32 s27, v5, 63")
    a("v_mov_b32 v6, s23")
    a("v_mov_b32 v7, s23")
    a("v_mul_f32 v6, s25, v6")
    a("v_mul_f32 v7, s27, v7")
    a("v_fma_f32 v7, -v6, v6, v7")
    a("v_max_f32 v7, 0, v7")
    round_bf(a, 6)
    finish(X, 52, 6, 7, False)
    a(f"s_mul_i32 s26, s3, {LN_RSB}")
    a(f"s_add_u32 s26, s26, {LN_OFFB}")
    a("v_add_u32 v50, s26, v3")
    a("ds_write_b128 v50, v[52:55]")
    a("ds_write_b128 v50, v[56:59] offset:1024")
    a("v_and_b32 v4, 7, v0")
    a("v_lshrrev_b32 v5, 3, v0")
    a(f"v_mul_u32_u24 v6, {LN_RSA}, v4")
    a("v_lshl_add_u32 v6, v5, 4, v6")
    a("v_lshrrev_b32 v7, 2, v5")
    a("v_lshlrev_b32 v7, 14, v7")
    a("v_and_b32 v5, 3, v5")
    a("v_lshl_add_u32 v7, v5, 8, v7")
    a("v_lshl_add_u32 v7, v4, 4, v7")
    a("s_lshr_b32 s26, s2, 5")
    a("s_lshl_b32 s26, s26, 19")
    a("s_lshr_b32 s27, s2, 1")
    a("s_and_b32 s27, s27, 15")
    a("s_lshl_b32 s27, s27, 10")
    a("s_add_u32 s26, s26, s27")
    a("s_and_b32 s27, s2, 1")
    a("s_lshl_b32 s27, s27, 7")
    a("s_add_u32 s26, s26, s27")
    a("s_add_u32 s27, s26, 0x40000")
    a("v_bfe_u32 v4, v1, 2, 2")
    a(f"v_mul_u32_u24 v4, {LN_RSB}, v4")
    a("v_lshrrev_b32 v5, 4, v1")
    a("v_lshl_add_u32 v4, v5, 5, v4")
    a("v_and_b32 v49, 3, v1")
    a("v_lshl_add_u32 v4, v49, 3, v4")
    a("s_lshl_b32 s28, s3, 7")
    a(f"s_add_u32 s28, s28, {LN_OFFB}")
    a("v_add_u32 v4, s28, v4")
    a("v_and_b32 v49, 15, v1")
    a("v_lshlrev_b32 v49, 4, v49")
    a("v_lshl_add_u32 v5, v5, 10, v49")
    a("s_lshr_b32 s28, s3, 1")
    a("s_lshl_b32 s28, s28, 19")
    a("s_lshr_b32 s29, s2, 2")
    a("s_lshl_b32 s29, s29, 13")
    a("s_add_u32 s28, s28, s29")
    a("s_and_b32 s29, s3, 1")
    a("s_lshl_b32 s29, s29, 12")
    a("s_add_u32 s28, s28, s29")
    a("s_and_b32 s29, s2, 3")
    a("s_lshl_b32 s29, s29, 8")
    a("s_add_u32 s28, s28, s29")
    a("s_add_u32 s29, s28, 0x200000")
    a("s_waitcnt lgkmcnt(0)")
    stamp(a, 2)
    a("s_barrier")
    a("ds_read_b128 v[8:11], v6")
    a("ds_read_b128 v[12:15], v6 offset:1024")
    a("ds_read_b64_tr_b16 v[16:17], v4")
    a(f"ds_read_b64_tr_b16 v[18:19], v4 offset:{4 * LN_RSB}")
    a("ds_read_b64_tr_b16 v[20:21], v4 offset:1024")
    a(f"ds_read_b64_tr_b16 v[22:23], v4 offset:{4 * LN_RSB + 1024}")
    a("s_waitcnt lgkmcnt(5)")
    a("buffer_store_dwordx4 v[8:11], v7, s[12:15], s26 offen")
    a("s_waitcnt lgkmcnt(4)")
    a("buffer_store_dwordx4 v[12:15], v7, s[12:15], s27 offen")
    a("s_waitcnt lgkmcnt(2)")
    a("buffer_store_dwordx4 v[16:19], v5, s[16:19], s28 offen")
    a("s_waitcnt lgkmcnt(0)")
    a("buffer_store_dwordx4 v[20:23], v5, s[16:19], s29 offen")
    stamp(a, 3)
    if STAMP:
        a("s_waitcnt vmcnt(0)")
    stamp(a, 4)
    stamp_store(a, 30, 0, 5)
    a.label("ln_done")
    a("s_endpgm")
    kernel_desc(a, name, 64, 102 if STAMP else 48)


def variants(maxoff, NS, STAGE):
    spv = (65535 - 15 - maxoff) // STAGE + 1
    return spv, -(-NS // spv)


def consumer(a, runs, KS, slotW, slotX, acc, wb, xb, NS, STAGE, tag, LEAD, zero_c=False, RPG=1, sCnt=44, CUT=5):
    stages = []
    for f, n in runs:
        stages += [f] * n
    NST = len(stages)
    M = []
    for k, f in enumerate(stages):
        for ks in range(KS):
            for e in f["mfma"]:
                M.append((k, k * KS + ks, e))
    first, last = {}, {}
    for p, (k, g, (ai, wi, xi, wA)) in enumerate(M):
        for F in (("W", g, wi), ("X", g, xi)):
            first.setdefault(F, p)
            last[F] = p
    slot = lambda F: ((slotW if F[0] == "W" else slotX)(F[1], F[2]))
    frags = sorted(first, key=lambda F: first[F])
    free, occ = {}, {}
    for F in frags:
        s = slot(F)
        free[F] = last[occ[s]] + 1 if s in occ else -10 ** 9
        assert free[F] <= first[F], ("slot conflict", F)
        occ[s] = F
    sfirst = {}
    for p, (k, g, e) in enumerate(M):
        sfirst.setdefault(k, p)
    barpos = {k: sfirst[k] - LEAD for k in range(NST)}
    bars = {v: k for k, v in barpos.items()}
    cuts = {v + CUT for k, v in barpos.items() if k > 0}
    pend = {"W": [F for F in frags if F[0] == "W"], "X": [F for F in frags if F[0] == "X"]}
    curst = {"W": 0, "X": 0}
    q = []
    wins = [[]]
    out = lambda s: wins[-1].append(s)
    seen_acc = set()
    part = []

    def addr(kind, k, bi, off):
        spv, reg = wb if kind == "W" else xb
        buf = k % NS
        o = (buf % spv) * STAGE + off
        assert o <= 65535 - 15
        return reg(bi, buf // spv), o

    def emit_read(F):
        kind, g, idx = F
        k, ks = g // KS, g % KS
        f = stages[k]
        if k != curst[kind]:
            assert k == curst[kind] + 1
            curst[kind] = k
            if stages[k - 1] is not f:
                for s in f.get("sw" + kind, []):
                    out(s)
        r0 = slot(F)
        if kind == "W":
            for r in range(2):
                ad, off = addr(kind, k, *f["wread"](idx, ks, r))
                part.append((F, f"ds_read_b64_tr_b16 {vr(r0 + 2 * r, 2)}, v{ad} offset:{off}"))
        else:
            ad, off = addr(kind, k, *f["xread"](idx, ks))
            part.append((F, f"ds_read_b128 {vr(r0, 4)}, v{ad} offset:{off}"))

    def flush_one():
        F, s = part.pop(0)
        out(s)
        q.append(F)

    def candidate(p):
        best = None
        for kind in ("W", "X"):
            lst = pend[kind]
            if not lst:
                continue
            kmin = lst[0][1] // KS
            for F in lst[:16]:
                if F[1] // KS != kmin:
                    break
                if free[F] <= p and barpos[F[1] // KS] < p:
                    if best is None or first[F] < first[best]:
                        best = F
                    break
        return best

    stalls = 0
    for p in range(-LEAD, len(M)):
        if p >= 0:
            k, g, (ai, wi, xi, wA) = M[p]
            need = {("W", g, wi), ("X", g, xi)}
            for F in need:
                while F in pend[F[0]] or any(x[0] == F for x in part):
                    stalls += 1
                    if part:
                        flush_one()
                    else:
                        G = pend[F[0]][0]
                        assert free[G] <= p and barpos[G[1] // KS] <= p, ("cannot force", G, p)
                        pend[F[0]].remove(G)
                        emit_read(G)
            pos = max([i for i, t in enumerate(q) if t in need], default=-1)
            if pos >= 0:
                n = len(q) - 1 - pos
                out(f"s_waitcnt lgkmcnt({min(n, 15)})")
                if n > 15:
                    pos = len(q) - 16
                del q[:pos + 1]
            w, x = vr(slot(("W", g, wi)), 4), vr(slot(("X", g, xi)), 4)
            A, B = (w, x) if wA else (x, w)
            c = vr(acc(ai), 4)
            z = zero_c and ai not in seen_acc
            seen_acc.add(ai)
            out(f"v_mfma_f32_16x16x32_bf16 {c}, {A}, {B}, {'0' if z else c}")
        if p in cuts:
            wins.append([])
            continue
        if p in bars:
            out("s_barrier")
            if p >= 0:
                continue
        for _ in range(RPG if p >= 0 else 4):
            if not part:
                F = candidate(p + 1)
                if F is None:
                    break
                pend[F[0]].remove(F)
                emit_read(F)
            flush_one()
    if stalls:
        print(f"[{tag}] forced reads: {stalls}", file=sys.stderr)
    a.gemm = True
    i = 0
    li = 0
    while i < len(wins):
        c = 1
        while wins[i + c * NS:i + (c + 1) * NS] == wins[i:i + NS] and i + (c + 1) * NS <= len(wins):
            c += 1
        if c >= 2:
            body = [s for w in wins[i:i + NS] for s in w]
            idx = [j for j, s in enumerate(body) if s.startswith("v_mfma")]
            body.insert(idx[-1], f"s_cmp_lg_u32 s{sCnt}, 0")
            body.insert(idx[-2], f"s_sub_u32 s{sCnt}, s{sCnt}, 1")
            a(f"s_mov_b32 s{sCnt}, {c}")
            a.label(f"{tag}_l{li}")
            for s in body:
                a(s)
            a(f"s_cbranch_scc1 {tag}_l{li}")
            li += 1
            i += c * NS
        else:
            for s in wins[i]:
                a(s)
            i += 1
    a.gemm = False


def producer_run(a, issue, P, NS, LAG, NK, sCnt, tag, switch=None):
    assert (NS - 1) * P <= 63
    for k in range(NS):
        issue()
    for j in range(LAG + 1):
        a(f"s_waitcnt vmcnt({(NS - 1 - j) * P})")
        a("s_barrier")
    if switch is None:
        segs = [(NK - NS, None)]
    else:
        kk, code = switch
        assert NS <= kk < NK
        segs = [(kk - NS, None), (NK - kk, code)]
    for si, (cnt, code) in enumerate(segs):
        if code:
            for s in code:
                a(s)
        if cnt <= 0:
            continue
        a(f"s_mov_b32 s{sCnt}, {cnt}")
        a.label(f"{tag}_ploop{si}")
        a(f"s_waitcnt vmcnt({(NS - 2 - LAG) * P})")
        a("s_barrier")
        issue()
        a(f"s_sub_u32 s{sCnt}, s{sCnt}, 1")
        a(f"s_cmp_lg_u32 s{sCnt}, 0")
        a(f"s_cbranch_scc1 {tag}_ploop{si}")
    for j in range(NK - NS + LAG + 1, NK):
        a(f"s_waitcnt vmcnt({(NK - 1 - j) * P})")
        a("s_barrier")


def w_lane_goff(a, dst, lane, ldw, t0, t1, mode, spar=None):
    a(f"v_lshrrev_b32 v{t0}, 3, v{lane}")
    a(f"v_mul_u32_u24 v{dst}, {ldw}, v{t0}")
    if mode == "p":
        a(f"v_lshrrev_b32 v{t0}, 4, v{lane}")
    else:
        a(f"v_bfe_u32 v{t0}, v{lane}, 4, 1")
        a(f"v_or_b32 v{t0}, {spar}, v{t0}")
    a(f"v_lshlrev_b32 v{t0}, 1, v{t0}")
    a(f"v_and_b32 v{t1}, 7, v{lane}")
    a(f"v_xor_b32 v{t0}, v{t0}, v{t1}")
    a(f"v_lshl_add_u32 v{dst}, v{t0}, 4, v{dst}")


def w_lane_laddr(a, dst, lane, mode, t0, t1):
    a(f"v_bfe_u32 v{t0}, v{lane}, 2, 2")
    a(f"v_lshrrev_b32 v{t1}, 4, v{lane}")
    a(f"v_lshl_add_u32 v{t0}, v{t1}, {3 if mode == 'nat' else 2}, v{t0}")
    a(f"v_lshlrev_b32 v{dst}, 7, v{t0}")
    a(f"v_bfe_u32 v{t0}, v{lane}, 3, 2")
    a(f"v_lshl_add_u32 v{dst}, v{t0}, 5, v{dst}")
    a(f"v_and_b32 v{t0}, 3, v{lane}")
    a(f"v_lshl_add_u32 v{dst}, v{t0}, 3, v{dst}")


G1 = dict(BK=32, NS=5, LAG=1, WB=3 * 4096, XB=16384)
G2 = dict(BK=32, NS=6, LAG=1, WB=4 * 4096, XB=8192)
K2_LDS = 163840
K2MAP = env("K2MAP", 0)
K3MAP = env("K3MAP", 1)
AT_K, AT_V, AT_Q = 0, 65536, 131072


def gen_k2(a):
    name = "k2_kernel"
    kernel_begin(a, name)
    a("s_cmp_ge_u32 s2, 256")
    a("s_cbranch_scc1 k2_done")
    a(f"s_load_dwordx2 s[4:5], s[0:1], {A_WQKV}")
    a(f"s_load_dwordx4 s[8:11], s[0:1], {B_W1}")
    a(f"s_load_dwordx2 s[6:7], s[0:1], {D_WS}")
    a("v_and_b32 v1, 63, v0")
    a("v_lshrrev_b32 v2, 6, v0")
    a("s_and_b32 s30, s2, 7")
    a("v_readfirstlane_b32 s3, v2")
    a("s_lshr_b32 s31, s2, 3")
    a("s_waitcnt lgkmcnt(0)")
    if K2MAP == 0:
        a("s_cmp_ge_u32 s31, 30")
        a("s_cbranch_scc1 k2_pf")
        a("s_cmp_ge_u32 s31, 14")
        a("s_cbranch_scc1 g1_entry")
    else:
        a("s_cmp_lt_u32 s30, 4")
        a("s_cbranch_scc1 g1_entry")
        a("s_cmp_ge_u32 s31, 28")
        a("s_cbranch_scc1 k2_pf")
    g = G2
    STAGE = g["WB"] + g["XB"]
    NK = 2048 // g["BK"]
    if K2MAP == 0:
        a("s_mul_i32 s32, s30, 14")
        a("s_add_u32 s32, s32, s31")
        a("s_cmp_ge_u32 s32, 56")
        a("s_cselect_b32 s33, 4, 0")
        a("s_cselect_b32 s34, 56, 0")
        a("s_sub_u32 s32, s32, s34")
        a("s_and_b32 s34, s32, 3")
        a("s_add_u32 s33, s33, s34")
        a("s_lshr_b32 s32, s32, 2")
    else:
        a("s_sub_u32 s32, s30, 4")
        a("s_mul_i32 s32, s32, 28")
        a("s_add_u32 s32, s32, s31")
        a("s_and_b32 s33, s32, 7")
        a("s_lshr_b32 s32, s32, 3")
    a("s_cmp_ge_u32 s3, 4")
    a("s_cbranch_scc1 g2_prod")
    stamp(a, 0)
    make_srd(a, 12, 10, 0, 3584 * 2)
    make_srd(a, 16, 6, WS_U, SZ_U)
    a("s_and_b32 s35, s3, 1")
    a("s_lshr_b32 s36, s3, 1")
    ACC = 128
    a("v_lshrrev_b32 v2, 4, v1")
    a("v_lshlrev_b32 v2, 3, v2")
    a("s_lshl_b32 s37, s32, 9")
    a("s_lshl_b32 s38, s35, 8")
    a("s_add_u32 s37, s37, s38")
    for w in range(8):
        a(f"buffer_load_dwordx2 {vr(16 + 2 * w, 2)}, v2, s[12:15], s37 offen offset:{w * 32}")
    w_lane_laddr(a, 4, 1, "nat", 8, 9)
    a("s_lshl_b32 s38, s35, 13")
    a("v_add_u32 v4, s38, v4")
    for sb in range(1, 4):
        a(f"v_xor_b32 v{4 + sb}, {sb * 32}, v4")
    a("v_lshlrev_b32 v8, 4, v1")
    a("s_lshl_b32 s38, s36, 12")
    a(f"s_add_u32 s38, s38, {g['WB']}")
    a("v_add_u32 v8, s38, v8")
    spw, nvw = variants(4096 + 512, g["NS"], STAGE)
    spx, nvx = variants(3072, g["NS"], STAGE)
    assert nvw == 2 and nvx == 2
    for sb in range(4):
        a(f"v_add_u32 v{10 + sb}, {spw * STAGE}, v{4 + sb}")
    a(f"v_add_u32 v9, {spx * STAGE}, v8")
    a("s_mov_b32 s39, 0xffff0000")
    a("s_waitcnt vmcnt(0)")
    for w in range(8):
        for j in range(2):
            for x in range(4):
                d = ACC + (w * 4 + x) * 4 + 2 * j
                a(f"v_lshlrev_b32 v{d}, 16, v{16 + 2 * w + j}")
                a(f"v_and_b32 v{d + 1}, s39, v{16 + 2 * w + j}")
    form = dict(
        mfma=[(w * 4 + x, w, x, True) for wg in range(2) for x in range(4) for w in range(wg * 4, wg * 4 + 4)],
        wread=lambda wi, ks, r: (wi & 3, (wi >> 2) * 4096 + r * 512),
        xread=lambda xi, ks: (0, xi * 1024),
    )
    stamp(a, 1)
    consumer(a, [(form, NK)], 1, lambda gs, wi: 16 + wi * 4, lambda gs, xi: 48 + xi * 4, lambda ai: ACC + ai * 4,
             (spw, lambda b, v: 4 + 6 * v + b), (spx, lambda b, v: 8 + v), g["NS"], STAGE, "g2c", env("LEAD2", 16))
    stamp(a, 2)
    c1 = -2.0 * 1.4426950408889634 * 0.7978845608028654
    c2 = c1 * 0.044715
    a(f"s_mov_b32 s46, {f2u(c1):#x}")
    a(f"s_mov_b32 s48, {f2u(c2):#x}")
    a(f"s_mov_b32 s49, {f2u(c2):#x}")
    a("s_mul_i32 s37, s33, 112")
    a("s_lshl_b32 s38, s32, 3")
    a("s_add_u32 s37, s37, s38")
    a("s_lshl_b32 s38, s35, 2")
    a("s_add_u32 s37, s37, s38")
    a("s_lshl_b32 s37, s37, 13")
    a("s_lshl_b32 s38, s36, 12")
    a("s_add_u32 s37, s37, s38")
    a("v_lshlrev_b32 v2, 4, v1")
    a("v_mov_b32 v4, s46")
    a("v_mov_b32 v5, s46")
    a("s_nop 7")
    n = 0
    for m in range(4):
        for x in range(4):
            src = [ACC + ((2 * m + t) * 4 + x) * 4 + 2 * h for t in range(2) for h in range(2)]
            tb = 16 + (n & 1) * 16
            n += 1
            for p in range(4):
                a(f"v_pk_mul_f32 {vr(tb + 2 * p, 2)}, {vr(src[p], 2)}, {vr(src[p], 2)}")
            for p in range(4):
                a(f"v_pk_fma_f32 {vr(tb + 2 * p, 2)}, {vr(tb + 2 * p, 2)}, s[48:49], v[4:5]")
            for p in range(4):
                a(f"v_pk_mul_f32 {vr(tb + 2 * p, 2)}, {vr(tb + 2 * p, 2)}, {vr(src[p], 2)}")
            for p in range(8):
                a(f"v_exp_f32 v{tb + p}, v{tb + p}")
            for p in range(4):
                a(f"v_pk_add_f32 {vr(tb + 2 * p, 2)}, {vr(tb + 2 * p, 2)}, 1.0 op_sel_hi:[1,0]")
            for p in range(8):
                a(f"v_rcp_f32 v{tb + p}, v{tb + p}")
            for p in range(4):
                a(f"v_pk_mul_f32 {vr(tb + 2 * p, 2)}, {vr(tb + 2 * p, 2)}, {vr(src[p], 2)}")
            for p in range(4):
                a(f"v_cvt_pk_bf16_f32 v{tb + 8 + p}, v{tb + 2 * p}, v{tb + 2 * p + 1}")
            if x == 0:
                a(f"s_add_u32 s38, s37, {m * 8192}")
            a(f"buffer_store_dwordx4 {vr(tb + 8, 4)}, v2, s[16:19], s38 offen offset:{x * 1024}")
    if STAMP:
        a("s_waitcnt vmcnt(0)")
    stamp(a, 3)
    stamp_store(a, 6, 1, 4)
    a("s_endpgm")
    a.label("g2_prod")
    a("s_sub_u32 s3, s3, 4")
    make_srd(a, 12, 8, 0, 2048 * 3584 * 2)
    make_srd(a, 16, 6, WS_HT, SZ_HT)
    ldw = 3584 * 2
    a("s_and_b32 s45, s3, 1")
    a("s_lshl_b32 s45, s45, 1")
    w_lane_goff(a, 4, 1, ldw, 2, 3, "nat", "s45")
    for cb in range(1, 4):
        a(f"v_add_u32 v{4 + cb}, {cb * 128}, v4")
    a("v_lshlrev_b32 v8, 4, v1")
    a(f"s_mul_i32 s35, s3, {8 * ldw}")
    a("s_lshl_b32 s36, s32, 9")
    a("s_add_u32 s35, s35, s36")
    a("s_lshl_b32 s36, s33, 19")
    a("s_lshl_b32 s37, s3, 11")
    a("s_add_u32 s36, s36, s37")
    a("s_lshl_b32 s38, s3, 10")
    a(f"s_add_u32 s39, s37, {g['WB']}")
    a("s_mov_b32 s40, 0")

    def issue2():
        for cb in range(4):
            a("s_add_u32 m0, s40, s38" if cb == 0 else "s_add_u32 m0, m0, 4096")
            a("s_nop 0")
            a(f"buffer_load_dwordx4 v{4 + cb}, s[12:15], s35 offen lds")
        a("s_add_u32 m0, s40, s39")
        a(f"s_add_u32 s35, s35, {g['BK'] * ldw}")
        a("buffer_load_dwordx4 v8, s[16:19], s36 offen lds")
        a("buffer_load_dwordx4 v8, s[16:19], s36 offen offset:1024 lds")
        a(f"s_add_u32 s36, s36, {g['XB']}")
        a(f"s_add_u32 s40, s40, {STAGE}")
        a(f"s_cmp_eq_u32 s40, {STAGE * g['NS']}")
        a("s_cselect_b32 s40, 0, s40")

    producer_run(a, issue2, 6, g["NS"], g["LAG"], NK, 44, "g2")
    a("s_endpgm")

    a.label("g1_entry")
    g = G1
    STAGE = g["WB"] + g["XB"]
    NK = 1024 // g["BK"]
    if K2MAP == 0:
        a("s_sub_u32 s31, s31, 14")
        a("s_and_b32 s32, s30, 3")
        a("s_lshl_b32 s32, s32, 2")
        a("s_and_b32 s33, s31, 3")
        a("s_add_u32 s32, s32, s33")
        a("s_lshr_b32 s33, s30, 2")
        a("s_lshl_b32 s33, s33, 2")
        a("s_lshr_b32 s34, s31, 2")
        a("s_add_u32 s33, s33, s34")
    elif K2MAP == 1:
        a("s_and_b32 s32, s30, 1")
        a("s_lshl_b32 s32, s32, 3")
        a("s_and_b32 s33, s31, 7")
        a("s_add_u32 s32, s32, s33")
        a("s_lshr_b32 s33, s30, 1")
        a("s_lshl_b32 s33, s33, 2")
        a("s_lshr_b32 s34, s31, 3")
        a("s_add_u32 s33, s33, s34")
    else:
        a("s_lshl_b32 s32, s30, 2")
        a("s_and_b32 s33, s31, 3")
        a("s_add_u32 s32, s32, s33")
        a("s_lshr_b32 s33, s31, 2")
    stamp(a, 0)
    a("s_cmp_ge_u32 s3, 4")
    a("s_cbranch_scc1 g1_prod")
    a("s_and_b32 s35, s3, 1")
    a("s_lshr_b32 s36, s3, 1")
    w_lane_laddr(a, 4, 1, "nat", 6, 7)
    a("s_lshl_b32 s38, s35, 6")
    a("v_xor_b32 v4, s38, v4")
    a("v_xor_b32 v5, 32, v4")
    a("v_lshlrev_b32 v6, 4, v1")
    a("s_lshl_b32 s38, s36, 13")
    a(f"s_add_u32 s38, s38, {g['WB']}")
    a("v_add_u32 v6, s38, v6")
    spw, nvw = variants(8192 + 512, g["NS"], STAGE)
    spx, nvx = variants(7168, g["NS"], STAGE)
    assert nvw <= 3 and nvx == 2
    for v in range(1, nvw):
        for b in range(2):
            a(f"v_add_u32 v{4 - 2 * v + b}, {v * spw * STAGE}, v{4 + b}")
    a(f"v_add_u32 v7, {spx * STAGE}, v6")
    ACC = 64
    form = dict(
        mfma=[(w * 8 + x, w, x, w < 4) for xp in range(4) for w in range(6) for x in (2 * xp, 2 * xp + 1)],
        wread=lambda wi, ks, r: (wi & 1, (wi >> 1) * 4096 + r * 512),
        xread=lambda xi, ks: (0, xi * 1024),
    )
    consumer(a, [(form, NK)], 1, lambda gs, wi: 8 + wi * 4, lambda gs, xi: 32 + xi * 4, lambda ai: ACC + ai * 4,
             (spw, lambda b, v: 4 - 2 * v + b), (spx, lambda b, v: 6 + v), g["NS"], STAGE, "g1c", env("LEAD1", 16), zero_c=True)
    a("v_mbcnt_lo_u32_b32 v1, -1, 0")
    a("v_mbcnt_hi_u32_b32 v1, -1, v1")
    stamp(a, 1)
    a("s_barrier")
    sc = (32 ** -0.5) * 1.4426950408889634
    a(f"s_mov_b32 s46, {f2u(sc):#x}")
    a(f"s_mov_b32 s47, {f2u(sc):#x}")
    make_srd(a, 12, 6, WS_KV, SZ_KV)
    a("v_lshrrev_b32 v2, 4, v1")
    a("v_and_b32 v3, 15, v1")
    a("v_lshlrev_b32 v3, 4, v3")
    a("v_lshl_add_u32 v4, v2, 9, v3")
    a("v_and_b32 v5, 1, v2")
    a("v_lshl_add_u32 v5, v5, 9, v3")
    a("v_lshrrev_b32 v2, 1, v2")
    a("v_lshl_add_u32 v5, v2, 8, v5")
    a("s_lshl_b32 s38, s35, 15")
    a("s_lshl_b32 s39, s36, 13")
    a("s_add_u32 s38, s38, s39")
    a("s_lshl_b32 s40, s32, 3")
    a("s_add_u32 s40, s40, s33")
    a("s_lshl_b32 s40, s40, 16")
    a("s_add_u32 s40, s40, s38")
    a("s_add_u32 s41, s40, 4096")
    a("s_add_u32 s42, s40, 16384")
    a("s_add_u32 s43, s42, 4096")
    a(f"s_add_u32 s38, s38, 16384")
    a(f"v_add_u32 v6, s38, v4")
    a(f"s_add_u32 s38, s38, {AT_V}")
    a("v_add_u32 v7, s38, v5")
    a("s_lshl_b32 s38, s35, 14")
    a("s_add_u32 s38, s38, s39")
    a(f"s_add_u32 s38, s38, {AT_Q}")
    a("v_add_u32 v0, s38, v4")
    n = 0
    for x in range(8):
        off = (x >> 1) * 2048 + (x & 1) * 256
        tb = 8 + (n % 12) * 4
        n += 1
        t0, t1 = ACC + (2 * 8 + x) * 4, ACC + (3 * 8 + x) * 4
        a(f"v_cvt_pk_bf16_f32 v{tb}, v{t0}, v{t0 + 1}")
        a(f"v_cvt_pk_bf16_f32 v{tb + 1}, v{t0 + 2}, v{t0 + 3}")
        a(f"v_cvt_pk_bf16_f32 v{tb + 2}, v{t1}, v{t1 + 1}")
        a(f"v_cvt_pk_bf16_f32 v{tb + 3}, v{t1 + 2}, v{t1 + 3}")
        tv = 8 + (n % 12) * 4
        n += 1
        for dt in range(2):
            t0 = ACC + ((4 + dt) * 8 + x) * 4
            a(f"v_cvt_pk_bf16_f32 v{tv + 2 * dt}, v{t0}, v{t0 + 1}")
            a(f"v_cvt_pk_bf16_f32 v{tv + 2 * dt + 1}, v{t0 + 2}, v{t0 + 3}")
        a(f"buffer_store_dwordx4 {vr(tb, 4)}, v4, s[12:15], s{40 + (x >> 2)} offen offset:{off & 4095} sc1")
        a(f"ds_write_b128 v6, {vr(tb, 4)} offset:{off}")
        a(f"v_permlane32_swap_b32 v{tv}, v{tv + 2}")
        a(f"v_permlane32_swap_b32 v{tv + 1}, v{tv + 3}")
        offv = (x >> 1) * 2048 + (x & 1) * 1024
        a("s_nop 0")
        a(f"buffer_store_dwordx4 {vr(tv, 4)}, v5, s[12:15], s{42 + (x >> 2)} offen offset:{offv & 4095} sc1")
        a(f"ds_write_b128 v7, {vr(tv, 4)} offset:{offv}")
    for x in range(8):
        off = (x >> 1) * 2048 + (x & 1) * 256
        tb = 8 + (n % 12) * 4
        n += 1
        t0, t1 = ACC + x * 4, ACC + (8 + x) * 4
        for t in (t0, t0 + 2, t1, t1 + 2):
            a(f"v_pk_mul_f32 {vr(t, 2)}, {vr(t, 2)}, s[46:47]")
        a(f"v_cvt_pk_bf16_f32 v{tb}, v{t0}, v{t0 + 1}")
        a(f"v_cvt_pk_bf16_f32 v{tb + 1}, v{t0 + 2}, v{t0 + 3}")
        a(f"v_cvt_pk_bf16_f32 v{tb + 2}, v{t1}, v{t1 + 1}")
        a(f"v_cvt_pk_bf16_f32 v{tb + 3}, v{t1 + 2}, v{t1 + 3}")
        a(f"ds_write_b128 v0, {vr(tb, 4)} offset:{off}")
    a("s_branch g1_att")
    a.label("g1_prod")
    a("s_sub_u32 s45, s3, 4")
    make_srd(a, 12, 4, 0, 1024 * 3072 * 2)
    make_srd(a, 16, 6, WS_XN, SZ_XN)
    ldw = 3072 * 2
    a("s_and_b32 s46, s3, 1")
    a("s_lshl_b32 s46, s46, 1")
    w_lane_goff(a, 4, 1, ldw, 2, 3, "nat", "s46")
    a("v_add_u32 v5, 2048, v4")
    a("v_add_u32 v6, 4096, v4")
    a("v_lshlrev_b32 v8, 4, v1")
    a(f"s_mul_i32 s35, s45, {8 * ldw}")
    a("s_lshl_b32 s36, s32, 7")
    a("s_add_u32 s35, s35, s36")
    a("s_lshl_b32 s36, s33, 19")
    a("s_lshl_b32 s37, s45, 12")
    a("s_add_u32 s36, s36, s37")
    a("s_lshl_b32 s38, s45, 10")
    a(f"s_add_u32 s39, s37, {g['WB']}")
    a("s_mov_b32 s40, 0")

    def issue1():
        for cb in range(3):
            a("s_add_u32 m0, s40, s38" if cb == 0 else "s_add_u32 m0, m0, 4096")
            a("s_nop 0")
            a(f"buffer_load_dwordx4 v{4 + cb}, s[12:15], s35 offen lds")
        a("s_add_u32 m0, s40, s39")
        a(f"s_add_u32 s35, s35, {g['BK'] * ldw}")
        for p in range(4):
            a(f"buffer_load_dwordx4 v8, s[16:19], s36 offen offset:{p * 1024} lds")
        a(f"s_add_u32 s36, s36, {g['XB']}")
        a(f"s_add_u32 s40, s40, {STAGE}")
        a(f"s_cmp_eq_u32 s40, {STAGE * g['NS']}")
        a("s_cselect_b32 s40, 0, s40")

    producer_run(a, issue1, 7, g["NS"], g["LAG"], NK, 44, "g1")
    stamp(a, 1)
    a("s_barrier")
    a.label("g1_att")
    gen_att(a)
    a.label("k2_pf")
    a(f"s_load_dwordx2 s[20:21], s[0:1], {A_WO}")
    a(f"s_load_dwordx2 s[22:23], s[0:1], {B_W2}")
    if K2MAP == 0:
        a("s_sub_u32 s32, s2, 240")
    else:
        a("s_sub_u32 s32, s31, 28")
        a("s_lshl_b32 s32, s32, 2")
        a("s_add_u32 s32, s32, s30")
        a("s_sub_u32 s32, s32, 4")
    a("s_lshl_b32 s32, s32, 3")
    a("s_add_u32 s32, s32, s3")
    a("s_lshl_b32 s32, s32, 13")
    a("v_lshlrev_b32 v2, 7, v1")
    make_srd(a, 12, 4, 0, 1024 * 3072 * 2)
    make_srd(a, 16, 8, 0, 2048 * 3584 * 2)
    a(f"s_add_u32 s33, s32, {PF_LN_QKV}")
    a(f"s_add_u32 s34, s32, {PF_LN_W1}")
    nq = -(-(1024 * 3072 * 2 - PF_LN_QKV) // MB)
    n1 = -(-(2048 * 3584 * 2 - PF_LN_W1) // MB)
    i1 = 0
    for i in range(max(nq, (n1 + 1) // 2)):
        if i < nq:
            a("buffer_load_dword v3, v2, s[12:15], s33 offen")
            a(f"s_add_u32 s33, s33, {MB}")
        for _ in range(2):
            if i1 < n1:
                a("buffer_load_dword v3, v2, s[16:19], s34 offen")
                a(f"s_add_u32 s34, s34, {MB}")
                i1 += 1
    a("s_waitcnt lgkmcnt(0)")
    if PF_K2_W2:
        make_srd(a, 12, 22, 0, PF_K2_W2)
        a("s_mov_b32 s33, s32")
        for i in range(-(-PF_K2_W2 // MB)):
            a("buffer_load_dword v3, v2, s[12:15], s33 offen")
            a(f"s_add_u32 s33, s33, {MB}")
    if PF_ATT == 0:
        make_srd(a, 16, 20, 0, 1024 * 1024 * 2)
        a("buffer_load_dword v3, v2, s[16:19], s32 offen")
        a(f"s_add_u32 s32, s32, {MB}")
        a("buffer_load_dword v3, v2, s[16:19], s32 offen")
    a.label("k2_done")
    a("s_endpgm")
    kernel_desc(a, name, 256)


PF_ATT = env("PF_ATT", 0)
PF_K2_W2 = int(env("PF_W2", 14.0) * MB)


def gen_att(a):
    make_srd(a, 12, 6, WS_KV, SZ_KV)
    make_srd(a, 16, 6, WS_FLG, SZ_FLG)
    make_srd(a, 20, 6, WS_O, SZ_O)
    a("v_lshlrev_b32 v3, 4, v1")
    a("s_and_b32 s34, s3, 1")
    a("s_lshr_b32 s35, s3, 1")
    a("s_sub_u32 s36, 7, s35")
    a("s_lshl_b32 s37, s32, 3")
    a("s_add_u32 s37, s37, s33")
    a("s_and_b32 s38, s3, 3")
    a("s_lshl_b32 s39, s37, 7")
    a("s_lshl_b32 s40, s38, 2")
    a("s_add_u32 s39, s39, s40")
    a("s_sub_u32 s40, s39, 128")
    a("s_lshl_b32 s41, s34, 15")
    a("s_lshr_b32 s42, s38, 1")
    a("s_lshl_b32 s42, s42, 13")
    a("s_add_u32 s41, s41, s42")
    a("s_lshl_b32 s42, s37, 16")
    a("s_add_u32 s42, s42, s41")
    a("s_sub_u32 s42, s42, 0x10000")
    a("v_and_b32 v5, 31, v1")
    a("v_lshrrev_b32 v6, 5, v1")
    a("v_lshlrev_b32 v6, 2, v6")
    a("v_sub_u32 v5, v5, v6")
    a("v_mov_b32 v7, 0xff800000")
    MA, MD = 224, 240
    for i in range(16):
        b = (i >> 2) * 8 + (i & 3)
        a(f"v_cmp_gt_i32 vcc, {b}, v5")
        a("s_nop 1")
        a(f"v_cndmask_b32 v{MA + i}, v7, 0, vcc")
        a(f"v_cndmask_b32 v{MD + i}, 0, v7, vcc")
    T = [dict(Q=64, O=80, NEG=96, L=112, M=114, j="s35"), dict(Q=72, O=128, NEG=144, L=116, M=118, j="s36")]
    S, E, P, KA, VA, MN = 160, 176, 192, 8, 16, 200
    M0, M1 = 24, 25
    vK, vV = 26, 27
    a("s_lshl_b32 s43, s34, 15")
    a("v_add_u32 v4, s43, v3")
    a("s_lshl_b32 s43, s34, 14")
    a(f"s_add_u32 s43, s43, {AT_Q}")
    a("v_add_u32 v6, s43, v3")
    a("v_and_b32 v2, 15, v1")
    a("v_lshlrev_b32 v2, 4, v2")
    a("v_bfe_u32 v28, v1, 4, 1")
    a("v_lshl_add_u32 v2, v28, 10, v2")
    a("v_lshrrev_b32 v28, 5, v1")
    a("v_lshl_add_u32 v2, v28, 8, v2")
    a("v_mov_b32 v29, 0")
    for t in T:
        for i in range(16):
            a(f"v_mov_b32 v{t['O'] + i}, 0")
        a(f"v_mov_b32 v{t['L']}, 0")
        a(f"v_mov_b32 v{t['L'] + 1}, 0")
    a("s_waitcnt lgkmcnt(0)")
    a("s_barrier")
    stamp(a, 2)
    for t in T:
        a(f"s_lshl_b32 s43, {t['j']}, 11")
        a("v_add_u32 v28, s43, v6")
        a(f"ds_read_b128 {vr(t['Q'], 4)}, v28")
        a(f"ds_read_b128 {vr(t['Q'] + 4, 4)}, v28 offset:1024")
    cnt = [0]

    def setup(t, part, reg, voff):
        if part == "A":
            a(f"s_add_u32 s43, {t['j']}, 8")
            a(f"s_add_u32 s44, {t['j']}, 1")
            a("s_mov_b32 s45, 0xfffff800")
        else:
            a(f"s_mov_b32 s43, {t['j']}")
            a(f"s_sub_u32 s44, 8, {t['j']}")
            a("s_mov_b32 s45, 2048")
        a("s_lshl_b32 s43, s43, 11")
        a(f"v_add_u32 v{vK}, s43, v4")

    def kread():
        a(f"ds_read_b128 {vr(KA, 4)}, v{vK}")
        a(f"ds_read_b128 {vr(KA + 4, 4)}, v{vK} offset:1024")
        a(f"v_add_u32 v{vK}, s45, v{vK}")

    def vread():
        a(f"ds_read_b128 {vr(VA, 4)}, v{vV}")
        a(f"ds_read_b128 {vr(VA + 4, 4)}, v{vV} offset:1024")
        a(f"v_add_u32 v{vV}, s45, v{vV}")

    def smm(t, c):
        a(f"v_mfma_f32_32x32x16_bf16 {vr(S, 16)}, {vr(KA, 4)}, {vr(t['Q'], 4)}, {c}")
        a(f"v_mfma_f32_32x32x16_bf16 {vr(S, 16)}, {vr(KA + 4, 4)}, {vr(t['Q'] + 4, 4)}, {vr(S, 16)}")

    def p1(t, part):
        cnt[0] += 1
        lb = f"att_p1_{cnt[0]}"
        setup(t, part, vK, 0)
        kread()
        a(f"v_mov_b32 v{M0}, v7")
        a(f"v_mov_b32 v{M1}, v7")
        a("s_waitcnt lgkmcnt(0)")
        smm(t, vr(MD if part == "A" else MA, 16))
        a.label(lb)
        kread()
        a("s_sub_u32 s44, s44, 1")
        a("s_cmp_eq_u32 s44, 0")
        a("s_nop 7")
        for i in range(0, 16, 4):
            a(f"v_max3_f32 v{M0}, v{M0}, v{S + i}, v{S + i + 1}")
            a(f"v_max3_f32 v{M1}, v{M1}, v{S + i + 2}, v{S + i + 3}")
        a(f"s_cbranch_scc1 {lb}_x")
        a("s_waitcnt lgkmcnt(0)")
        smm(t, "0")
        a(f"s_branch {lb}")
        a.label(lb + "_x")
        a(f"v_max_f32 v{M0}, v{M0}, v{M1}")
        a(f"v_mov_b32 v{M1}, v{M0}")
        a("s_nop 1")
        a(f"v_permlane32_swap_b32 v{M0}, v{M1}")
        a("s_nop 1")
        if part == "A":
            a(f"v_max_f32 v{t['M']}, v{M0}, v{M1}")
        else:
            a(f"v_max3_f32 v{M0}, v{M0}, v{M1}, v{t['M']}")
            a(f"v_sub_f32 v{M1}, v{t['M']}, v{M0}")
            a(f"v_exp_f32 v{M1}, v{M1}")
            a(f"v_mov_b32 v{t['M']}, v{M0}")
            for i in range(0, 16, 2):
                a(f"v_pk_mul_f32 {vr(t['O'] + i, 2)}, {vr(t['O'] + i, 2)}, {vr(M0, 2)} op_sel:[0,1] op_sel_hi:[1,1]")
            a(f"v_pk_mul_f32 {vr(t['L'], 2)}, {vr(t['L'], 2)}, {vr(M0, 2)} op_sel:[0,1] op_sel_hi:[1,1]")
        for i in range(16):
            a(f"v_sub_f32 v{t['NEG'] + i}, 0, v{t['M']}")
        a("s_waitcnt lgkmcnt(0)")

    def p2(t, part):
        cnt[0] += 1
        lb = f"att_p2_{cnt[0]}"
        setup(t, part, vK, 0)
        a(f"v_add_u32 v{vV}, {AT_V}, v{vK}")
        kread()
        mk = MD if part == "A" else MA
        for i in range(16):
            a(f"v_sub_f32 v{MN + i}, v{mk + i}, v{t['M']}")
        a("s_waitcnt lgkmcnt(0)")
        a("s_nop 0")
        smm(t, vr(MN, 16))
        kread()
        vread()
        a("s_nop 7")
        a.label(lb)
        for i in range(16):
            a(f"v_exp_f32 v{E + i}, v{S + i}")
        a("s_waitcnt lgkmcnt(2)")
        smm(t, vr(t['NEG'], 16))
        kread()
        for i in range(8):
            a(f"v_cvt_pk_bf16_f32 v{P + i}, v{E + 2 * i}, v{E + 2 * i + 1}")
        for i in range(0, 16, 2):
            a(f"v_pk_add_f32 {vr(t['L'], 2)}, {vr(t['L'], 2)}, {vr(E + i, 2)}")
        a("s_sub_u32 s44, s44, 1")
        a("s_cmp_lg_u32 s44, 0")
        a("s_waitcnt lgkmcnt(2)")
        a(f"v_mfma_f32_32x32x16_bf16 {vr(t['O'], 16)}, {vr(VA, 4)}, {vr(P, 4)}, {vr(t['O'], 16)}")
        a(f"v_mfma_f32_32x32x16_bf16 {vr(t['O'], 16)}, {vr(VA + 4, 4)}, {vr(P + 4, 4)}, {vr(t['O'], 16)}")
        vread()
        a(f"s_cbranch_scc1 {lb}")
        a("s_waitcnt lgkmcnt(0)")

    def fin(t, pk):
        L = t['L']
        a(f"v_add_f32 v{L}, v{L}, v{L + 1}")
        a(f"v_mov_b32 v{L + 1}, v{L}")
        a("s_nop 1")
        a(f"v_permlane32_swap_b32 v{L}, v{L + 1}")
        a("s_nop 1")
        a(f"v_add_f32 v{L}, v{L}, v{L + 1}")
        a(f"v_rcp_f32 v{L}, v{L}")
        a("s_lshl_b32 s43, s33, 3")
        a(f"s_add_u32 s43, s43, {t['j']}")
        a("s_lshr_b32 s44, s43, 2")
        a("s_lshl_b32 s44, s44, 5")
        a("s_lshl_b32 s45, s32, 1")
        a("s_add_u32 s44, s44, s45")
        a("s_add_u32 s44, s44, s34")
        a("s_lshl_b32 s44, s44, 13")
        a("s_and_b32 s43, s43, 3")
        a("s_lshl_b32 s43, s43, 11")
        a("s_add_u32 s44, s44, s43")
        for i in range(0, 16, 2):
            a(f"v_pk_mul_f32 {vr(t['O'] + i, 2)}, {vr(t['O'] + i, 2)}, {vr(L, 2)} op_sel_hi:[1,0]")
        for i in range(8):
            a(f"v_cvt_pk_bf16_f32 v{pk + i}, v{t['O'] + 2 * i}, v{t['O'] + 2 * i + 1}")
        a(f"buffer_store_dwordx4 {vr(pk, 4)}, v2, s[20:23], s44 offen")
        a(f"buffer_store_dwordx4 {vr(pk + 4, 4)}, v2, s[20:23], s44 offen offset:512")

    p1(T[1], "A")
    p1(T[0], "A")
    a("s_cmp_ge_u32 s3, 4")
    a("s_cbranch_scc1 att_s1")
    a("v_mov_b32 v28, 1")
    a("s_waitcnt vmcnt(0)")
    a("buffer_store_dword v28, v29, s[16:19], s39 offen sc1")
    a.label("att_s1")
    stamp(a, 3)
    p2(T[0], "A")
    a("s_cmp_lt_u32 s3, 4")
    a("s_cbranch_scc1 att_s2")
    a("s_cmp_eq_u32 s33, 0")
    a("s_cbranch_scc1 att_s2")
    a("s_mov_b32 s44, 0")
    a.label("att_poll")
    a("buffer_load_dword v28, v29, s[16:19], s40 offen sc1")
    a("s_waitcnt vmcnt(0)")
    a("v_cmp_ne_u32 vcc, 0, v28")
    a("s_cbranch_vccnz att_got")
    a("s_sleep 1")
    a("s_add_u32 s44, s44, 1")
    a(f"s_cmp_lt_u32 s44, {SPIN_MAX}")
    a("s_cbranch_scc1 att_poll")
    a.label("att_got")
    for kv in range(2):
        for hh in range(2):
            a(f"s_add_u32 m0, s41, {kv * AT_V + hh * 4096}")
            a(f"s_add_u32 s43, s42, {kv * 16384 + hh * 4096}")
            for p in range(4):
                a(f"buffer_load_dwordx4 v3, s[12:15], s43 offen offset:{p * 1024} sc1 lds")
    a.label("att_s2")
    stamp(a, 4)
    p2(T[1], "A")
    a("s_waitcnt vmcnt(0)")
    a("s_barrier")
    stamp(a, 5)
    if PF_ATT:
        a(f"s_load_dwordx2 s[24:25], s[0:1], {B_W2}")
        a(f"s_load_dwordx2 s[26:27], s[0:1], {A_WO}")
        a("s_lshl_b32 s44, s37, 3")
        a("s_add_u32 s44, s44, s3")
        a("s_lshl_b32 s44, s44, 13")
        a("v_lshlrev_b32 v30, 7, v1")
        a("s_waitcnt lgkmcnt(0)")
        make_srd(a, 48, 24, 0, 3584 * 2048 * 2)
        make_srd(a, 52, 26, 0, 2 * MB)
        a(f"s_add_u32 s45, s44, {PF_K2_W2}")
        a("buffer_load_dword v31, v30, s[48:51], s45 offen")
        a("s_add_u32 s45, s45, 0x800000")
        a("buffer_load_dword v31, v30, s[48:51], s45 offen")
        a("buffer_load_dword v31, v30, s[52:55], s44 offen")
    a("s_cmp_eq_u32 s33, 0")
    a("s_cbranch_scc1 att_nob0")
    p1(T[1], "B")
    p2(T[1], "B")
    a.label("att_nob0")
    a("s_nop 7")
    fin(T[1], 32)
    a("s_cmp_eq_u32 s33, 0")
    a("s_cbranch_scc1 att_nob1")
    p1(T[0], "B")
    p2(T[0], "B")
    a.label("att_nob1")
    a("s_nop 7")
    fin(T[0], 40)
    stamp(a, 6)
    stamp_store(a, 6, 1, 7)
    a("s_endpgm")


G3 = dict(BK=64, NS=5, LAG=1, WB=16384, XB=16384)
K3_LDS = G3["NS"] * (G3["WB"] + G3["XB"])
NKA = 36


def gen_k3(a):
    name = "k3_kernel"
    g = G3
    STAGE = g["WB"] + g["XB"]
    kernel_begin(a, name)
    a("s_cmp_ge_u32 s2, 256")
    a("s_cbranch_scc1 k3_done")
    a(f"s_load_dwordx2 s[4:5], s[0:1], {A_X}")
    a(f"s_load_dwordx2 s[6:7], s[0:1], {A_WO}")
    a(f"s_load_dwordx4 s[8:11], s[0:1], {B_W2}")
    a(f"s_load_dwordx2 s[24:25], s[0:1], {D_OUT}")
    a(f"s_load_dwordx2 s[26:27], s[0:1], {D_WS}")
    a("v_and_b32 v1, 63, v0")
    a("v_lshrrev_b32 v2, 6, v0")
    a("s_and_b32 s30, s2, 7")
    a("v_readfirstlane_b32 s3, v2")
    a("s_lshr_b32 s31, s2, 3")
    if K3MAP == 0:
        a("s_and_b32 s29, s31, 1")
        a("s_lshr_b32 s31, s31, 1")
        a("s_and_b32 s32, s30, 1")
        a("s_lshl_b32 s32, s32, 2")
        a("s_and_b32 s33, s31, 3")
        a("s_add_u32 s32, s32, s33")
        a("s_lshr_b32 s33, s30, 1")
        a("s_lshl_b32 s33, s33, 2")
        a("s_lshr_b32 s34, s31, 2")
        a("s_add_u32 s33, s33, s34")
    else:
        a("s_and_b32 s29, s30, 1")
        a("s_and_b32 s32, s31, 7")
        a("s_lshr_b32 s33, s30, 1")
        a("s_lshl_b32 s33, s33, 2")
        a("s_lshr_b32 s34, s31, 3")
        a("s_add_u32 s33, s33, s34")
    a("s_waitcnt lgkmcnt(0)")
    a("s_cmp_ge_u32 s3, 4")
    a("s_cbranch_scc1 k3_prod")
    stamp(a, 0)
    make_srd(a, 12, 4, 0, 4 * MB)
    make_srd(a, 16, 10, 0, 4096)
    make_srd(a, 20, 24, 0, 4 * MB)
    a("s_and_b32 s35, s3, 1")
    a("s_lshr_b32 s36, s3, 1")
    ACC = 128
    a("v_and_b32 v2, 15, v1")
    a("v_lshrrev_b32 v3, 4, v1")
    a("v_lshlrev_b32 v9, 11, v2")
    a("v_lshl_add_u32 v10, v3, 3, v9")
    a("v_and_b32 v11, 1, v3")
    a("v_lshl_add_u32 v9, v11, 5, v9")
    a("v_lshrrev_b32 v11, 1, v3")
    a("v_lshl_add_u32 v9, v11, 4, v9")
    a("v_lshlrev_b32 v2, 1, v2")
    a("s_lshl_b32 s37, s33, 7")
    a("s_lshl_b32 s38, s36, 6")
    a("s_add_u32 s37, s37, s38")
    a("s_lshl_b32 s38, s29, 5")
    a("s_add_u32 s37, s37, s38")
    a("s_lshl_b32 s39, s37, 1")
    a("s_lshl_b32 s37, s37, 11")
    a("s_lshl_b32 s38, s32, 8")
    a("s_add_u32 s37, s37, s38")
    a("s_lshl_b32 s38, s35, 7")
    a("s_add_u32 s37, s37, s38")
    a("s_add_u32 s38, s37, 0x8000")
    XT = 96
    for sh in range(2):
        for di in range(4):
            a(f"buffer_load_dwordx2 {vr(XT + (sh * 4 + di) * 2, 2)}, v10, s[12:15], s{37 + sh} offen offset:{di * 32}")
    a("buffer_load_ushort v112, v2, s[16:19], s39 offen")
    a("buffer_load_ushort v113, v2, s[16:19], s39 offen offset:32")
    w_lane_laddr(a, 4, 1, "p16", 2, 12)
    a("s_lshl_b32 s46, s36, 13")
    a("s_lshl_b32 s47, s35, 12")
    a("s_lshl_b32 s48, s35, 13")
    a("s_lshl_b32 s49, s36, 12")
    a("v_add_u32 v4, s46, v4")
    for sb in range(1, 4):
        a(f"v_xor_b32 v{4 + sb}, {sb * 32}, v4")
    a("v_lshlrev_b32 v8, 4, v1")
    a(f"s_add_u32 s50, s47, {g['WB']}")
    a("v_add_u32 v8, s50, v8")
    a("s_sub_u32 s48, s48, s46")
    a("s_sub_u32 s49, s49, s47")
    a("v_lshlrev_b32 v11, 10, v11")
    a("v_add_u32 v11, s48, v11")
    spw, nvw = variants(4096 + 2048, g["NS"], STAGE)
    spx, nvx = variants(8192 + 3072, g["NS"], STAGE)
    assert nvw == 3 and nvx == 3
    wreg = lambda b, v: (4 + b if v == 0 else 76 + 4 * v + b)
    xreg = lambda b, v: (8 if v == 0 else 87 + v)
    for v in range(1, 3):
        for sb in range(4):
            a(f"v_add_u32 v{wreg(sb, v)}, {v * spw * STAGE}, v{4 + sb}")
        a(f"v_add_u32 v{xreg(0, v)}, {v * spx * STAGE}, v8")
    formY = dict(mfma=[(si * 4 + di, si, di, False) for sp in range(2) for di in range(4) for si in (2 * sp, 2 * sp + 1)],
                 wread=lambda wi, ks, r: (wi, ks * 4096 + r * 2048),
                 xread=lambda xi, ks: (0, ks * 8192 + xi * 1024))
    formO = dict(mfma=[(si * 4 + di, di, si, True) for dp in range(2) for si in range(4) for di in (2 * dp, 2 * dp + 1)],
                 wread=lambda wi, ks, r: (wi, ks * 4096 + r * 1024),
                 xread=lambda xi, ks: (0, ks * 8192 + xi * 1024),
                 swW=[f"v_add_u32 v{wreg(sb, v)}, v11, v{wreg(sb, v)}" for sb in range(4) for v in range(3)],
                 swX=[f"v_add_u32 v{xreg(0, v)}, s49, v{xreg(0, v)}" for v in range(3)])
    sW = lambda gs, wi: 16 + ((gs & 1) * 8 + wi) * 4
    sX = lambda gs, xi: 16 + ((gs & 1) * 8 + 4 + xi) * 4
    stamp(a, 1)
    a("s_cmp_eq_u32 s29, 1")
    a("s_cbranch_scc1 k3_cb")
    consumer(a, [(formY, NKA)], 2, sW, sX, lambda ai: ACC + ai * 4, (spw, wreg), (spx, xreg), g["NS"], STAGE, "k3a", env("LEAD3", 16), zero_c=True)
    a("s_branch k3_cend")
    a.label("k3_cb")
    consumer(a, [(formY, 56 - NKA), (formO, 16)], 2, sW, sX, lambda ai: ACC + ai * 4, (spw, wreg), (spx, xreg), g["NS"], STAGE, "k3b", env("LEAD3", 16), zero_c=True)
    a("s_nop 7")
    for i in range(32):
        a(f"v_swap_b32 v{ACC + i}, v{ACC + 32 + i}")
    a.label("k3_cend")
    stamp(a, 2)
    make_srd(a, 12, 26, WS_EX, SZ_EX)
    make_srd(a, 16, 26, WS_FLG + FLG_K3, SZ_FLG - FLG_K3)
    a("s_lshl_b32 s40, s2, 2")
    a("s_add_u32 s40, s40, s3")
    a(f"s_xor_b32 s41, s2, {8 if K3MAP == 0 else 1}")
    a("s_lshl_b32 s41, s41, 2")
    a("s_add_u32 s41, s41, s3")
    a("s_lshl_b32 s42, s40, 13")
    a("s_lshl_b32 s43, s41, 13")
    a("s_add_u32 s44, s42, 4096")
    a("s_add_u32 s45, s43, 4096")
    a("s_lshl_b32 s40, s40, 5")
    a("s_lshl_b32 s41, s41, 5")
    a("v_lshlrev_b32 v3, 4, v1")
    a("s_nop 4")
    for p in range(8):
        a(f"buffer_store_dwordx4 {vr(ACC + 32 + 4 * p, 4)}, v3, s[12:15], {'s42' if p < 4 else 's44'} offen offset:{(p & 3) * 1024} sc1")
    a("s_mov_b32 s39, 0xffff0000")
    a("s_waitcnt vmcnt(8)")
    a("v_lshlrev_b32 v112, 16, v112")
    a("v_lshlrev_b32 v113, 16, v113")
    for sh in range(2):
        for di in range(4):
            for j in range(2):
                src = XT + (sh * 4 + di) * 2 + j
                d = ACC + (sh * 4 + di) * 4 + 2 * j
                a(f"v_lshlrev_b32 v16, 16, v{src}")
                a(f"v_and_b32 v17, s39, v{src}")
                a(f"v_add_f32 v16, v16, v{112 + sh}")
                a(f"v_add_f32 v17, v17, v{112 + sh}")
                a(f"v_pk_add_f32 {vr(d, 2)}, {vr(d, 2)}, v[16:17]")
    a("v_mov_b32 v12, 1")
    a("v_mov_b32 v13, 0")
    a("s_waitcnt vmcnt(0)")
    a("buffer_store_dword v12, v13, s[16:19], s40 offen sc1")
    a("s_mov_b32 s46, 0")
    a.label("k3_poll")
    a("buffer_load_dword v14, v13, s[16:19], s41 offen sc1")
    a("s_waitcnt vmcnt(0)")
    a("v_cmp_ne_u32 vcc, 0, v14")
    a("s_cbranch_vccnz k3_got")
    a("s_sleep 1")
    a("s_add_u32 s46, s46, 1")
    a(f"s_cmp_lt_u32 s46, {SPIN_MAX}")
    a("s_cbranch_scc1 k3_poll")
    a.label("k3_got")
    stamp(a, 3)
    for p in range(8):
        a(f"buffer_load_dwordx4 {vr(16 + 4 * p, 4)}, v3, s[12:15], {'s43' if p < 4 else 's45'} offen offset:{(p & 3) * 1024} sc1")
    for sh in range(2):
        for dp in range(2):
            p0 = sh * 4 + dp * 2
            a(f"s_waitcnt vmcnt({6 - p0 + (sh * 2 + dp)})")
            for t in range(2):
                for j in range(2):
                    d = ACC + (p0 + t) * 4 + 2 * j
                    a(f"v_pk_add_f32 {vr(d, 2)}, {vr(d, 2)}, {vr(16 + (p0 + t) * 4 + 2 * j, 2)}")
            tb = 64 + (sh * 2 + dp) * 4
            for t in range(2):
                for j in range(2):
                    d = ACC + (p0 + t) * 4 + 2 * j
                    a(f"v_cvt_pk_bf16_f32 v{tb + 2 * t + j}, v{d}, v{d + 1}")
            a("s_nop 1")
            a(f"v_permlane16_swap_b32 v{tb}, v{tb + 2}")
            a(f"v_permlane16_swap_b32 v{tb + 1}, v{tb + 3}")
            a("s_nop 1")
            a(f"buffer_store_dwordx4 {vr(tb, 4)}, v9, s[20:23], s{37 + sh} offen offset:{dp * 64}")
    if STAMP:
        a("s_waitcnt vmcnt(0)")
    stamp(a, 4)
    stamp_store(a, 26, 3, 5)
    a("s_endpgm")
    a.label("k3_prod")
    a("s_sub_u32 s3, s3, 4")
    make_srd(a, 12, 8, 0, 3584 * 2048 * 2)
    make_srd(a, 16, 26, WS_U, SZ_U)
    ldY, ldO = 4096, 2048
    w_lane_goff(a, 4, 1, ldY, 2, 3, "p")
    a("v_add_u32 v5, 128, v4")
    w_lane_goff(a, 6, 1, ldO, 2, 3, "p")
    a("v_add_u32 v7, 128, v6")
    a("v_lshlrev_b32 v8, 4, v1")
    a(f"s_mul_i32 s35, s3, {16 * ldY}")
    a("s_lshl_b32 s36, s33, 8")
    a("s_add_u32 s35, s35, s36")
    a(f"s_mul_i32 s36, s29, {NKA * 64 * ldY}")
    a("s_add_u32 s35, s35, s36")
    a(f"s_mul_i32 s36, s32, {112 * 8192}")
    a("s_lshl_b32 s37, s3, 12")
    a("s_add_u32 s36, s36, s37")
    a(f"s_mul_i32 s38, s29, {NKA * 16384}")
    a("s_add_u32 s36, s36, s38")
    a("s_lshl_b32 s38, s3, 11")
    a(f"s_add_u32 s39, s37, {g['WB']}")
    a("s_mov_b32 s40, 0")
    a(f"s_mov_b32 s41, {8 * ldY}")
    a(f"s_mov_b32 s42, {64 * ldY}")

    def issue3():
        a("s_add_u32 m0, s40, s38")
        a("s_add_u32 s43, s35, s41")
        a("buffer_load_dwordx4 v4, s[12:15], s35 offen lds")
        a("s_add_u32 m0, m0, 1024")
        a("s_nop 0")
        a("buffer_load_dwordx4 v4, s[12:15], s43 offen lds")
        a("s_add_u32 m0, m0, 8192")
        a("s_nop 0")
        a("buffer_load_dwordx4 v5, s[12:15], s43 offen lds")
        a("s_sub_u32 m0, m0, 1024")
        a("s_nop 0")
        a("buffer_load_dwordx4 v5, s[12:15], s35 offen lds")
        a("s_add_u32 m0, s40, s39")
        a("s_add_u32 s35, s35, s42")
        for p in range(4):
            a(f"buffer_load_dwordx4 v8, s[16:19], s36 offen offset:{p * 1024} lds")
        a(f"s_add_u32 s36, s36, {g['XB']}")
        a(f"s_add_u32 s40, s40, {STAGE}")
        a(f"s_cmp_eq_u32 s40, {STAGE * g['NS']}")
        a("s_cselect_b32 s40, 0, s40")

    b = Asm()
    b("s_cmp_eq_u32 s29, 0")
    b("s_cbranch_scc1 k3_nosw")
    make_srd(b, 12, 6, 0, 1024 * 1024 * 2)
    make_srd(b, 16, 26, WS_O, SZ_O)
    b("v_mov_b32 v4, v6")
    b("v_mov_b32 v5, v7")
    b(f"s_mul_i32 s35, s3, {16 * ldO}")
    b("s_lshl_b32 s36, s32, 8")
    b("s_add_u32 s35, s35, s36")
    b("s_lshl_b32 s36, s33, 18")
    b("s_add_u32 s36, s36, s37")
    b(f"s_mov_b32 s41, {8 * ldO}")
    b(f"s_mov_b32 s42, {64 * ldO}")
    b.label("k3_nosw")
    assert 56 - NKA + 16 == NKA
    producer_run(a, issue3, 8, g["NS"], g["LAG"], NKA, 44, "k3", switch=(56 - NKA, b.lines()))
    a.label("k3_done")
    a("s_endpgm")
    kernel_desc(a, name, 256)


HEADER = open("cdna_kernels/" + NAME + ".s.ref").read().split("; Override launch")[0]


def main(out):
    a = Asm()
    a.raw(HEADER.rstrip("\n"))
    E = env("EMPTY", "")
    el = "; @launch kernel=e_kernel grid=(256,1,1) block=(64,1,1) lds=0"
    for _ in range(E.count("0")):
        a.raw(el)
    a.raw(f"; @launch kernel=ln_kernel grid=(256,1,1) block=(512,1,1) lds={LN_LDS}")
    for _ in range(E.count("1")):
        a.raw(el)
    a.raw(f"; @launch kernel=k2_kernel grid=(256,1,1) block=(512,1,1) lds={K2_LDS}")
    a.raw(f"; @launch kernel=k3_kernel grid=(256,1,1) block=(512,1,1) lds={K3_LDS}")
    for _ in range(E.count("3")):
        a.raw(el)
    a.raw('.amdgcn_target "amdgcn-amd-amdhsa--gfx950"')
    if E:
        kernel_begin(a, "e_kernel")
        a("s_endpgm")
        kernel_desc(a, "e_kernel", 8, 16)
    gen_ln(a)
    gen_k2(a)
    gen_k3(a)
    open(out, "w").write(a.text())


if __name__ == "__main__":
    main(sys.argv[1] if len(sys.argv) > 1 else "cdna_kernels/" + NAME + ".s")
```

```python
from gen2 import Asm, kernel_begin, kernel_desc
a = Asm()
a.raw("; @launch grid=(512,1,1) block=(64,1,1) lds=0")
a.raw('.amdgcn_target "amdgcn-amd-amdhsa--gfx950"')
kernel_begin(a, "ev_kernel")
a.raw(".rept 24000")
a("v_add3_u32 v1, v1, v2, v3")
a.raw(".endr")
a("s_endpgm")
kernel_desc(a, "ev_kernel", 8, 16)
open("ev.s", "w").write(a.text())
```

```python
import sys, struct, os

NAME = "parallel_sum__sliding_block__mixer_token_mlp__prompt"
MB = 1 << 20
WS_XN, WS_HT, WS_KV, WS_U, WS_O, WS_EX, WS_FLG = 0, 4 * MB, 8 * MB, 20 * MB, 28 * MB, 32 * MB, 44 * MB
SZ_XN, SZ_HT, SZ_KV, SZ_U, SZ_O, SZ_EX, SZ_FLG = 4 * MB, 4 * MB, 8 * MB, 8 * 112 * 8192, 4 * MB, 8 * MB, 65536
FLG_K3 = 16384
A_X, A_WQKV, A_WO, B_X, B_W1, B_B1, B_W2, B_B2, D_OUT, D_DBG, D_WS = [8 * i for i in range(11)]
ABL = os.environ.get("ABL", "").split(",")
STAMP = "stamp" in ABL
WS_STAMP = 64 * MB
SPIN_MAX = 200000


def env(k, d):
    return type(d)(os.environ.get(k, d))


def f2u(x):
    return struct.unpack("<I", struct.pack("<f", x))[0]


class Asm:
    def __init__(self):
        self.L = []

    def __call__(self, s):
        if "noload" in ABL and s.endswith("offen lds") or "noload" in ABL and s.endswith(" lds") and "sc1" not in s:
            return
        if "noread" in ABL and getattr(self, "gemm", False) and (s.startswith("ds_read") or s.startswith("s_waitcnt lgkm")):
            return
        self.L.append("    " + s)

    def label(self, s):
        self.L.append(s + ":")

    def raw(self, s):
        self.L.append(s)

    def text(self):
        return "\n".join(self.L) + "\n"

    def lines(self):
        return [x.strip() for x in self.L]


def vr(b, n):
    return f"v[{b}:{b + n - 1}]"


def kernel_begin(a, name):
    a.raw(".text")
    a.raw(f".globl {name}")
    a.raw(".p2align 8")
    a.raw(f".type {name},@function")
    a.label(name)


def kernel_desc(a, name, vgpr, sgpr=102):
    acc = (vgpr + 3) // 4 * 4
    a.raw('.section .rodata,"a"')
    a.raw(".p2align 6")
    a.raw(f".amdhsa_kernel {name}")
    a.raw(f"  .amdhsa_next_free_vgpr {vgpr}")
    a.raw(f"  .amdhsa_next_free_sgpr {sgpr}")
    a.raw(f"  .amdhsa_accum_offset {acc}")
    a.raw("  .amdhsa_group_segment_fixed_size 0")
    a.raw("  .amdhsa_kernarg_size 88")
    a.raw("  .amdhsa_user_sgpr_count 2")
    a.raw("  .amdhsa_user_sgpr_kernarg_segment_ptr 1")
    a.raw("  .amdhsa_system_sgpr_workgroup_id_x 1")
    a.raw("  .amdhsa_float_denorm_mode_32 3")
    a.raw(".end_amdhsa_kernel")


def make_srd(a, d, base, off, size):
    if off:
        a(f"s_add_u32 s{d}, s{base}, {off:#x}")
        a(f"s_addc_u32 s{d + 1}, s{base + 1}, 0")
    else:
        a(f"s_mov_b32 s{d}, s{base}")
        a(f"s_mov_b32 s{d + 1}, s{base + 1}")
    a(f"s_mov_b32 s{d + 2}, {size:#x}")
    a(f"s_mov_b32 s{d + 3}, 0x00020000")


DBG = "dbg" in ABL
_ct = [0]


def dbg(a, kidx, slot, v0, wait=False):
    if not DBG:
        return
    _ct[0] += 1
    lb = f"dbgx{_ct[0]}"
    if slot not in (0, 2, 8):
        a("s_lshr_b32 s92, s2, 3")
        a("s_xor_b32 s92, s92, s2")
        a("s_and_b32 s92, s92, 7")
        a(f"s_cbranch_scc1 {lb}")
        a("s_and_b32 s92, s3, 3")
        a("s_cmp_lg_u32 s92, 3")
        a(f"s_cbranch_scc1 {lb}")
    if wait:
        a("s_waitcnt vmcnt(0)")
    a(f"s_load_dwordx2 s[92:93], s[0:1], {D_DBG}")
    a("s_memrealtime s[94:95]")
    a("s_waitcnt lgkmcnt(0)")
    a(f"s_add_u32 s96, s92, {512 * (2 - kidx)}")
    a("s_addc_u32 s97, s93, 0")
    a("s_mov_b32 s98, 256")
    a("s_mov_b32 s99, 0x00020000")
    a(f"v_mov_b32 v{v0}, s94")
    a(f"v_mov_b32 v{v0 + 1}, 0")
    a("s_mov_b64 s[92:93], exec")
    a("s_mov_b64 exec, 1")
    a(f"buffer_atomic_umax v{v0}, v{v0 + 1}, s[96:99], 0 offen offset:{4 * slot}")
    a("s_mov_b64 exec, -1")
    a.label(lb)


def stamp(a, i):
    if not STAMP:
        return
    a(f"s_memtime s[{64 + 4 * i}:{65 + 4 * i}]")
    a(f"s_memrealtime s[{66 + 4 * i}:{67 + 4 * i}]")
    a("s_waitcnt lgkmcnt(0)")


def stamp_store(a, wsb, kid, n, wave="s3"):
    if not STAMP:
        return
    make_srd(a, 96, wsb, WS_STAMP, 16 * MB)
    a("s_lshl_b32 s100, s2, 3")
    a(f"s_add_u32 s100, s100, {wave}")
    a(f"s_add_u32 s100, s100, {kid * 4096}")
    a("s_lshl_b32 s100, s100, 7")
    a("v_mov_b32 v0, 0")
    for i in range(n):
        for j in range(4):
            a(f"v_mov_b32 v{4 + j}, s{64 + 4 * i + j}")
        a(f"buffer_store_dwordx4 v[4:7], v0, s[96:99], s100 offen offset:{16 * i}")
        a("s_nop 2")


PF_LN_QKV = int(env("PF_QKV", 3.0) * MB) // 8192 * 8192
PF_LN_W1 = int(env("PF_W1", 5.0) * MB) // 8192 * 8192
PF_ATT = env("PF_ATT", 0)
PF_K2_W2 = int(env("PF_W2", 0.0) * MB)
LN_RSA = 2048 + 16
LN_RSB = 2048 + 64
LN_OFFB = 8 * LN_RSA
LN_LDS = LN_OFFB + 8 * LN_RSB


def wave_reduce(a, regs):
    steps = ["row_shr:1 row_mask:0xf bank_mask:0xf bound_ctrl:0",
             "row_shr:2 row_mask:0xf bank_mask:0xf bound_ctrl:0",
             "row_shr:4 row_mask:0xf bank_mask:0xf bound_ctrl:0",
             "row_shr:8 row_mask:0xf bank_mask:0xf bound_ctrl:0",
             "row_bcast:15 row_mask:0xa bank_mask:0xf",
             "row_bcast:31 row_mask:0xc bank_mask:0xf"]
    for st in steps:
        a("s_nop 1")
        for r in regs:
            a(f"v_add_f32_dpp v{r}, v{r}, v{r} {st}")


def round_bf(a, r):
    a(f"v_cvt_pk_bf16_f32 v{r}, v{r}, v{r}")
    a(f"v_lshlrev_b32 v{r}, 16, v{r}")


def gen_ln(a):
    name = "ln_kernel"
    kernel_begin(a, name)
    a("s_cmp_ge_u32 s2, 256")
    a("s_cbranch_scc1 ln_done")
    stamp(a, 0)
    if DBG:
        a("s_cmp_lg_u32 s2, 0")
        a("s_cbranch_scc1 ln_d0")
        dbg(a, 0, 0, 40)
        a("s_waitcnt vmcnt(0)")
        a.label("ln_d0")
    a(f"s_load_dwordx4 s[4:7], s[0:1], {A_X}")
    a(f"s_load_dwordx2 s[30:31], s[0:1], {D_WS}")
    a(f"s_load_dwordx2 s[32:33], s[0:1], {B_W1}")
    a("v_and_b32 v1, 63, v0")
    a("v_lshrrev_b32 v2, 6, v0")
    a("v_lshlrev_b32 v3, 4, v1")
    a("v_readfirstlane_b32 s3, v2")
    a("s_lshl_b32 s20, s2, 3")
    a("s_add_u32 s20, s20, s3")
    a("s_lshl_b32 s21, s20, 11")
    a("s_waitcnt lgkmcnt(0)")
    make_srd(a, 8, 4, 0, 4 * MB)
    a("buffer_load_dwordx4 v[8:11], v3, s[8:11], s21 offen")
    a("buffer_load_dwordx4 v[12:15], v3, s[8:11], s21 offen offset:1024")
    npf = 0
    a("v_lshlrev_b32 v60, 7, v1")
    a("s_lshl_b32 s34, s20, 13")
    if PF_LN_QKV:
        make_srd(a, 36, 6, 0, PF_LN_QKV)
        a("buffer_load_dword v61, v60, s[36:39], s34 offen")
        npf += 1
    if PF_LN_W1:
        make_srd(a, 40, 32, 0, PF_LN_W1)
        a("buffer_load_dword v62, v60, s[40:43], s34 offen")
        npf += 1
    npf += code_touch(a, "k2_kernel", "code_end", 48, 60, 63, 1, "s34")
    make_srd(a, 12, 30, WS_XN, SZ_XN)
    make_srd(a, 16, 30, WS_HT, SZ_HT)
    make_srd(a, 44, 30, WS_FLG, SZ_FLG)
    a("s_cmp_lg_u32 s3, 0")
    a("s_cbranch_scc1 ln_noflag")
    a("v_lshlrev_b32 v4, 2, v1")
    a("v_mov_b32 v5, 0")
    a("s_lshl_b32 s35, s2, 8")
    a("buffer_store_dword v5, v4, s[44:47], s35 offen")
    a(f"s_waitcnt vmcnt({npf + 1})")
    a.label("ln_noflag")
    a("s_mov_b32 s22, 0xffff0000")
    a(f"s_mov_b32 s23, {f2u(1.0 / 1024):#x}")
    a(f"s_mov_b32 s24, {f2u(1e-5):#x}")
    X = 16
    a("s_cmp_eq_u32 s3, 0")
    a("s_cbranch_scc1 ln_loaded")
    a(f"s_waitcnt vmcnt({npf})")
    a.label("ln_loaded")
    stamp(a, 1)
    for i in range(8):
        a(f"v_lshlrev_b32 v{X + 2 * i}, 16, v{8 + i}")
        a(f"v_and_b32 v{X + 2 * i + 1}, s22, v{8 + i}")
    a(f"v_add_f32 v4, v{X}, v{X + 1}")
    a(f"v_add_f32 v5, v{X + 2}, v{X + 3}")
    for i in range(4, 16, 2):
        a(f"v_add_f32 v4, v4, v{X + i}")
        a(f"v_add_f32 v5, v5, v{X + i + 1}")
    a("v_add_f32 v4, v4, v5")
    wave_reduce(a, [4])
    a("s_nop 1")
    a("v_readlane_b32 s25, v4, 63")
    a("s_nop 1")
    a("v_mov_b32 v6, s23")
    a("v_mul_f32 v6, s25, v6")
    D = 32
    for i in range(16):
        a(f"v_sub_f32 v{D + i}, v{X + i}, v6")
    a(f"v_mul_f32 v4, v{D}, v{D}")
    a(f"v_mul_f32 v5, v{D + 1}, v{D + 1}")
    for i in range(2, 16, 2):
        a(f"v_fmac_f32 v4, v{D + i}, v{D + i}")
        a(f"v_fmac_f32 v5, v{D + i + 1}, v{D + i + 1}")
    a("v_add_f32 v4, v4, v5")
    wave_reduce(a, [4])
    a("s_nop 1")
    a("v_readlane_b32 s25, v4, 63")
    round_bf(a, 6)
    a("v_mov_b32 v7, s23")
    a("v_mul_f32 v7, s25, v7")

    def finish(src, dst_pk, mean, var, unpack):
        round_bf(a, var)
        a(f"v_add_f32 v{var}, s24, v{var}")
        round_bf(a, var)
        a(f"v_sqrt_f32 v{var}, v{var}")
        a("s_nop 0")
        round_bf(a, var)
        a(f"v_rcp_f32 v48, v{var}")
        for i in range(16):
            a(f"v_sub_f32 v{D + i}, v{src + i}, v{mean}")
        for i in range(8):
            a(f"v_cvt_pk_bf16_f32 v{dst_pk + i}, v{D + 2 * i}, v{D + 2 * i + 1}")
        for i in range(8):
            a(f"v_lshlrev_b32 v{D + 2 * i}, 16, v{dst_pk + i}")
            a(f"v_and_b32 v{D + 2 * i + 1}, s22, v{dst_pk + i}")
        for i in range(16):
            a(f"v_mul_f32 v{src + i}, v{D + i}, v48")
        for i in range(16):
            a(f"v_fma_f32 v{D + i}, -v{src + i}, v{var}, v{D + i}")
        for i in range(16):
            a(f"v_fmac_f32 v{src + i}, v{D + i}, v48")
        for i in range(8):
            a(f"v_cvt_pk_bf16_f32 v{dst_pk + i}, v{src + 2 * i}, v{src + 2 * i + 1}")
        if unpack:
            for i in range(8):
                a(f"v_lshlrev_b32 v{src + 2 * i}, 16, v{dst_pk + i}")
                a(f"v_and_b32 v{src + 2 * i + 1}, s22, v{dst_pk + i}")

    finish(X, 8, 6, 7, True)
    a(f"s_mul_i32 s26, s3, {LN_RSA}")
    a("v_add_u32 v50, s26, v3")
    a("ds_write_b128 v50, v[8:11]")
    a("ds_write_b128 v50, v[12:15] offset:1024")
    a(f"v_add_f32 v4, v{X}, v{X + 1}")
    a(f"v_mul_f32 v5, v{X}, v{X}")
    a(f"v_fmac_f32 v5, v{X + 1}, v{X + 1}")
    for i in range(2, 16):
        a(f"v_add_f32 v4, v4, v{X + i}")
        a(f"v_fmac_f32 v5, v{X + i}, v{X + i}")
    wave_reduce(a, [4, 5])
    a("s_nop 1")
    a("v_readlane_b32 s25, v4, 63")
    a("v_readlane_b32 s27, v5, 63")
    a("v_mov_b32 v6, s23")
    a("v_mov_b32 v7, s23")
    a("v_mul_f32 v6, s25, v6")
    a("v_mul_f32 v7, s27, v7")
    a("v_fma_f32 v7, -v6, v6, v7")
    a("v_max_f32 v7, 0, v7")
    round_bf(a, 6)
    finish(X, 52, 6, 7, False)
    a(f"s_mul_i32 s26, s3, {LN_RSB}")
    a(f"s_add_u32 s26, s26, {LN_OFFB}")
    a("v_add_u32 v50, s26, v3")
    a("ds_write_b128 v50, v[52:55]")
    a("ds_write_b128 v50, v[56:59] offset:1024")
    a("v_and_b32 v4, 7, v0")
    a("v_lshrrev_b32 v5, 3, v0")
    a(f"v_mul_u32_u24 v6, {LN_RSA}, v4")
    a("v_lshl_add_u32 v6, v5, 4, v6")
    a("v_lshrrev_b32 v7, 2, v5")
    a("v_lshlrev_b32 v7, 14, v7")
    a("v_and_b32 v5, 3, v5")
    a("v_lshl_add_u32 v7, v5, 8, v7")
    a("v_lshl_add_u32 v7, v4, 4, v7")
    a("s_lshr_b32 s26, s2, 5")
    a("s_lshl_b32 s26, s26, 19")
    a("s_lshr_b32 s27, s2, 1")
    a("s_and_b32 s27, s27, 15")
    a("s_lshl_b32 s27, s27, 10")
    a("s_add_u32 s26, s26, s27")
    a("s_and_b32 s27, s2, 1")
    a("s_lshl_b32 s27, s27, 7")
    a("s_add_u32 s26, s26, s27")
    a("s_add_u32 s27, s26, 0x40000")
    a("v_bfe_u32 v4, v1, 2, 2")
    a(f"v_mul_u32_u24 v4, {LN_RSB}, v4")
    a("v_lshrrev_b32 v5, 4, v1")
    a("v_lshl_add_u32 v4, v5, 5, v4")
    a("v_and_b32 v49, 3, v1")
    a("v_lshl_add_u32 v4, v49, 3, v4")
    a("s_lshl_b32 s28, s3, 7")
    a(f"s_add_u32 s28, s28, {LN_OFFB}")
    a("v_add_u32 v4, s28, v4")
    a("v_and_b32 v49, 15, v1")
    a("v_lshlrev_b32 v49, 4, v49")
    a("v_lshl_add_u32 v5, v5, 10, v49")
    a("s_lshr_b32 s28, s3, 1")
    a("s_lshl_b32 s28, s28, 19")
    a("s_lshr_b32 s29, s2, 2")
    a("s_lshl_b32 s29, s29, 13")
    a("s_add_u32 s28, s28, s29")
    a("s_and_b32 s29, s3, 1")
    a("s_lshl_b32 s29, s29, 12")
    a("s_add_u32 s28, s28, s29")
    a("s_and_b32 s29, s2, 3")
    a("s_lshl_b32 s29, s29, 8")
    a("s_add_u32 s28, s28, s29")
    a("s_add_u32 s29, s28, 0x200000")
    a("s_waitcnt lgkmcnt(0)")
    stamp(a, 2)
    a("s_barrier")
    a("ds_read_b128 v[8:11], v6")
    a("ds_read_b128 v[12:15], v6 offset:1024")
    a("ds_read_b64_tr_b16 v[16:17], v4")
    a(f"ds_read_b64_tr_b16 v[18:19], v4 offset:{4 * LN_RSB}")
    a("ds_read_b64_tr_b16 v[20:21], v4 offset:1024")
    a(f"ds_read_b64_tr_b16 v[22:23], v4 offset:{4 * LN_RSB + 1024}")
    a("s_waitcnt lgkmcnt(5)")
    a("buffer_store_dwordx4 v[8:11], v7, s[12:15], s26 offen")
    a("s_waitcnt lgkmcnt(4)")
    a("buffer_store_dwordx4 v[12:15], v7, s[12:15], s27 offen")
    a("s_waitcnt lgkmcnt(2)")
    a("buffer_store_dwordx4 v[16:19], v5, s[16:19], s28 offen")
    a("s_waitcnt lgkmcnt(0)")
    a("buffer_store_dwordx4 v[20:23], v5, s[16:19], s29 offen")
    stamp(a, 3)
    if STAMP:
        a("s_waitcnt vmcnt(0)")
    stamp(a, 4)
    stamp_store(a, 30, 0, 5)
    dbg(a, 0, 1, 40, True)
    a.label("ln_done")
    a("s_endpgm")
    kernel_desc(a, name, 64, 102 if STAMP or DBG else 56)


def variants(maxoff, NS, STAGE):
    spv = (65535 - 15 - maxoff) // STAGE + 1
    return spv, -(-NS // spv)


def consumer(a, runs, KS, slotW, slotX, acc, wb, xb, NS, STAGE, tag, LEAD, zero_c=False, RPG=1, sCnt=44, CUT=5):
    stages = []
    for f, n in runs:
        stages += [f] * n
    NST = len(stages)
    M = []
    for k, f in enumerate(stages):
        for ks in range(KS):
            for e in f["mfma"]:
                M.append((k, k * KS + ks, e))
    first, last = {}, {}
    for p, (k, g, (ai, wi, xi, wA)) in enumerate(M):
        for F in (("W", g, wi), ("X", g, xi)):
            first.setdefault(F, p)
            last[F] = p
    slot = lambda F: ((slotW if F[0] == "W" else slotX)(F[1], F[2]))
    frags = sorted(first, key=lambda F: first[F])
    free, occ = {}, {}
    for F in frags:
        s = slot(F)
        free[F] = last[occ[s]] + 1 if s in occ else -10 ** 9
        assert free[F] <= first[F], ("slot conflict", F)
        occ[s] = F
    sfirst = {}
    for p, (k, g, e) in enumerate(M):
        sfirst.setdefault(k, p)
    barpos = {k: sfirst[k] - LEAD for k in range(NST)}
    bars = {v: k for k, v in barpos.items()}
    cuts = {v + CUT for k, v in barpos.items() if k > 0}
    pend = {"W": [F for F in frags if F[0] == "W"], "X": [F for F in frags if F[0] == "X"]}
    curst = {"W": 0, "X": 0}
    q = []
    wins = [[]]
    out = lambda s: wins[-1].append(s)
    seen_acc = set()
    part = []

    def addr(kind, k, bi, off):
        spv, reg = wb if kind == "W" else xb
        buf = k % NS
        o = (buf % spv) * STAGE + off
        assert o <= 65535 - 15
        return reg(bi, buf // spv), o

    def emit_read(F):
        kind, g, idx = F
        k, ks = g // KS, g % KS
        f = stages[k]
        if k != curst[kind]:
            assert k == curst[kind] + 1
            curst[kind] = k
            if stages[k - 1] is not f:
                for s in f.get("sw" + kind, []):
                    out(s)
        r0 = slot(F)
        if kind == "W":
            for r in range(2):
                ad, off = addr(kind, k, *f["wread"](idx, ks, r))
                part.append((F, f"ds_read_b64_tr_b16 {vr(r0 + 2 * r, 2)}, v{ad} offset:{off}"))
        else:
            ad, off = addr(kind, k, *f["xread"](idx, ks))
            part.append((F, f"ds_read_b128 {vr(r0, 4)}, v{ad} offset:{off}"))

    def flush_one():
        F, s = part.pop(0)
        out(s)
        q.append(F)

    def candidate(p):
        best = None
        for kind in ("W", "X"):
            lst = pend[kind]
            if not lst:
                continue
            kmin = lst[0][1] // KS
            for F in lst[:16]:
                if F[1] // KS != kmin:
                    break
                if free[F] <= p and barpos[F[1] // KS] < p:
                    if best is None or first[F] < first[best]:
                        best = F
                    break
        return best

    stalls = 0
    for p in range(-LEAD, len(M)):
        if p >= 0:
            k, g, (ai, wi, xi, wA) = M[p]
            need = {("W", g, wi), ("X", g, xi)}
            for F in need:
                while F in pend[F[0]] or any(x[0] == F for x in part):
                    stalls += 1
                    if part:
                        flush_one()
                    else:
                        G = pend[F[0]][0]
                        assert free[G] <= p and barpos[G[1] // KS] <= p, ("cannot force", G, p)
                        pend[F[0]].remove(G)
                        emit_read(G)
            pos = max([i for i, t in enumerate(q) if t in need], default=-1)
            if pos >= 0:
                n = len(q) - 1 - pos
                out(f"s_waitcnt lgkmcnt({min(n, 15)})")
                if n > 15:
                    pos = len(q) - 16
                del q[:pos + 1]
            w, x = vr(slot(("W", g, wi)), 4), vr(slot(("X", g, xi)), 4)
            A, B = (w, x) if wA else (x, w)
            c = vr(acc(ai), 4)
            z = zero_c and ai not in seen_acc
            seen_acc.add(ai)
            out(f"v_mfma_f32_16x16x32_bf16 {c}, {A}, {B}, {'0' if z else c}")
        if p in cuts:
            wins.append([])
            continue
        if p in bars:
            out("s_barrier")
            if p >= 0:
                continue
        for _ in range(RPG if p >= 0 else 4):
            if not part:
                F = candidate(p + 1)
                if F is None:
                    break
                pend[F[0]].remove(F)
                emit_read(F)
            flush_one()
    if stalls:
        print(f"[{tag}] forced reads: {stalls}", file=sys.stderr)
    a.gemm = True
    i = 0
    li = 0
    while i < len(wins):
        c = 1
        while wins[i + c * NS:i + (c + 1) * NS] == wins[i:i + NS] and i + (c + 1) * NS <= len(wins):
            c += 1
        if c >= 2:
            body = [s for w in wins[i:i + NS] for s in w]
            idx = [j for j, s in enumerate(body) if s.startswith("v_mfma")]
            body.insert(idx[-1], f"s_cmp_lg_u32 s{sCnt}, 0")
            body.insert(idx[-2], f"s_sub_u32 s{sCnt}, s{sCnt}, 1")
            a(f"s_mov_b32 s{sCnt}, {c}")
            a.label(f"{tag}_l{li}")
            for s in body:
                a(s)
            a(f"s_cbranch_scc1 {tag}_l{li}")
            li += 1
            i += c * NS
        else:
            for s in wins[i]:
                a(s)
            i += 1
    a.gemm = False


def producer_run(a, issue, P, NS, LAG, NK, sCnt, tag, switch=None, tail=(), ntail=0):
    assert (NS - 1) * P <= 63
    for k in range(NS):
        issue()
    for j in range(LAG + 1):
        a(f"s_waitcnt vmcnt({(NS - 1 - j) * P})")
        a("s_barrier")
    if switch is None:
        segs = [(NK - NS, None)]
    else:
        kk, code = switch
        assert NS <= kk < NK
        segs = [(kk - NS, None), (NK - kk, code)]
    for si, (cnt, code) in enumerate(segs):
        if code:
            for s in code:
                a(s)
        if cnt <= 0:
            continue
        a(f"s_mov_b32 s{sCnt}, {cnt}")
        a.label(f"{tag}_ploop{si}")
        a(f"s_waitcnt vmcnt({(NS - 2 - LAG) * P})")
        a("s_barrier")
        issue()
        a(f"s_sub_u32 s{sCnt}, s{sCnt}, 1")
        a(f"s_cmp_lg_u32 s{sCnt}, 0")
        a(f"s_cbranch_scc1 {tag}_ploop{si}")
    for s in tail:
        a(s)
    for j in range(NK - NS + LAG + 1, NK):
        a(f"s_waitcnt vmcnt({(NK - 1 - j) * P + ntail})")
        a("s_barrier")


ST1, ST2 = env("ST1", 0), env("ST2", 0)
G2T = env("G2T", 4)


def stouch(a, n):
    for i in range(n):
        a(f"s_buffer_load_dword s60, s[56:59], s61 offset:{64 * i}")
    if n:
        a(f"s_add_u32 s61, s61, {64 * n}")


CT = env("CT", 1)


def code_touch(a, start, end, srd, vT, vD, ninstr, soff="0"):
    if not CT:
        return 0
    _ct[0] += 1
    lb = f"ct{_ct[0]}"
    a(f"s_getpc_b64 s[{srd}:{srd + 1}]")
    a.label(lb)
    a(f"s_add_u32 s{srd}, s{srd}, {start}-{lb}")
    a(f"s_addc_u32 s{srd + 1}, s{srd + 1}, 0")
    a(f"s_mov_b32 s{srd + 2}, {end}-{start}")
    a(f"s_mov_b32 s{srd + 3}, 0x00020000")
    if ninstr == 1:
        a(f"buffer_load_dword v{vD}, v{vT}, s[{srd}:{srd + 3}], {soff} offen")
        return 1
    for i in range(ninstr):
        a(f"s_mov_b32 s{srd + 4}, {i * 8192}")
        a(f"buffer_load_dword v{vD}, v{vT}, s[{srd}:{srd + 3}], s{srd + 4} offen")
    return ninstr


def w_lane_goff(a, dst, lane, ldw, t0, t1, mode, spar=None):
    a(f"v_lshrrev_b32 v{t0}, 3, v{lane}")
    a(f"v_mul_u32_u24 v{dst}, {ldw}, v{t0}")
    if mode == "p":
        a(f"v_lshrrev_b32 v{t0}, 4, v{lane}")
    else:
        a(f"v_bfe_u32 v{t0}, v{lane}, 4, 1")
        a(f"v_or_b32 v{t0}, {spar}, v{t0}")
    a(f"v_lshlrev_b32 v{t0}, 1, v{t0}")
    a(f"v_and_b32 v{t1}, 7, v{lane}")
    a(f"v_xor_b32 v{t0}, v{t0}, v{t1}")
    a(f"v_lshl_add_u32 v{dst}, v{t0}, 4, v{dst}")


def w_lane_laddr(a, dst, lane, mode, t0, t1):
    a(f"v_bfe_u32 v{t0}, v{lane}, 2, 2")
    a(f"v_lshrrev_b32 v{t1}, 4, v{lane}")
    a(f"v_lshl_add_u32 v{t0}, v{t1}, {3 if mode == 'nat' else 2}, v{t0}")
    a(f"v_lshlrev_b32 v{dst}, 7, v{t0}")
    a(f"v_bfe_u32 v{t0}, v{lane}, 3, 2")
    a(f"v_lshl_add_u32 v{dst}, v{t0}, 5, v{dst}")
    a(f"v_and_b32 v{t0}, 3, v{lane}")
    a(f"v_lshl_add_u32 v{dst}, v{t0}, 3, v{dst}")


G1 = dict(BK=32, NS=5, LAG=1, WB=3 * 4096, XB=16384)
G2 = dict(BK=32, NS=6, LAG=1, WB=4 * 4096, XB=8192)
K2_LDS = 163840
K2MAP = env("K2MAP", 0)
K3MAP = env("K3MAP", 1)
AT_V, AT_Q = 32768, 131072


def gen_k2(a):
    name = "k2_kernel"
    kernel_begin(a, name)
    a("s_cmp_ge_u32 s2, 256")
    a("s_cbranch_scc1 k2_done")
    if DBG:
        a("s_cmp_lg_u32 s2, 0")
        a("s_cbranch_scc1 k2_d0")
        dbg(a, 1, 2, 40)
        a("s_waitcnt vmcnt(0)")
        a.label("k2_d0")
    a(f"s_load_dwordx2 s[4:5], s[0:1], {A_WQKV}")
    a(f"s_load_dwordx4 s[8:11], s[0:1], {B_W1}")
    a(f"s_load_dwordx2 s[6:7], s[0:1], {D_WS}")
    a(f"s_load_dwordx2 s[62:63], s[0:1], {B_W2}")
    a("v_and_b32 v1, 63, v0")
    a("v_lshrrev_b32 v2, 6, v0")
    a("s_and_b32 s30, s2, 7")
    a("v_readfirstlane_b32 s3, v2")
    a("s_lshr_b32 s31, s2, 3")
    a("s_waitcnt lgkmcnt(0)")
    if K2MAP == 0:
        a("s_cmp_ge_u32 s31, 30")
        a("s_cbranch_scc1 k2_pf")
        a("s_cmp_ge_u32 s31, 14")
        a("s_cbranch_scc1 g1_entry")
    else:
        a("s_cmp_lt_u32 s30, 4")
        a("s_cbranch_scc1 g1_entry")
        a("s_cmp_ge_u32 s31, 28")
        a("s_cbranch_scc1 k2_pf")
    g = G2
    STAGE = g["WB"] + g["XB"]
    NK = 2048 // g["BK"]
    if K2MAP == 0:
        a("s_mul_i32 s32, s30, 14")
        a("s_add_u32 s32, s32, s31")
        a("s_cmp_ge_u32 s32, 56")
        a("s_cselect_b32 s33, 4, 0")
        a("s_cselect_b32 s34, 56, 0")
        a("s_sub_u32 s32, s32, s34")
        a("s_and_b32 s34, s32, 3")
        a("s_add_u32 s33, s33, s34")
        a("s_lshr_b32 s32, s32, 2")
    else:
        a("s_sub_u32 s32, s30, 4")
        a("s_mul_i32 s32, s32, 28")
        a("s_add_u32 s32, s32, s31")
        a("s_and_b32 s33, s32, 7")
        a("s_lshr_b32 s32, s32, 3")
    a("s_cmp_ge_u32 s3, 4")
    a("s_cbranch_scc1 g2_prod")
    stamp(a, 0)
    make_srd(a, 12, 10, 0, 3584 * 2)
    make_srd(a, 16, 6, WS_U, SZ_U)
    a("s_and_b32 s35, s3, 1")
    a("s_lshr_b32 s36, s3, 1")
    ACC = 128
    a("v_lshrrev_b32 v2, 4, v1")
    a("v_lshlrev_b32 v2, 3, v2")
    a("s_lshl_b32 s37, s32, 9")
    a("s_lshl_b32 s38, s35, 8")
    a("s_add_u32 s37, s37, s38")
    for w in range(8):
        a(f"buffer_load_dwordx2 {vr(16 + 2 * w, 2)}, v2, s[12:15], s37 offen offset:{w * 32}")
    w_lane_laddr(a, 4, 1, "nat", 8, 9)
    a("s_lshl_b32 s38, s35, 13")
    a("v_add_u32 v4, s38, v4")
    for sb in range(1, 4):
        a(f"v_xor_b32 v{4 + sb}, {sb * 32}, v4")
    a("v_lshlrev_b32 v8, 4, v1")
    a("s_lshl_b32 s38, s36, 12")
    a(f"s_add_u32 s38, s38, {g['WB']}")
    a("v_add_u32 v8, s38, v8")
    spw, nvw = variants(4096 + 512, g["NS"], STAGE)
    spx, nvx = variants(3072, g["NS"], STAGE)
    assert nvw == 2 and nvx == 2
    for sb in range(4):
        a(f"v_add_u32 v{10 + sb}, {spw * STAGE}, v{4 + sb}")
    a(f"v_add_u32 v9, {spx * STAGE}, v8")
    a("s_mov_b32 s39, 0xffff0000")
    a("s_waitcnt vmcnt(0)")
    for w in range(8):
        for j in range(2):
            for x in range(4):
                d = ACC + (w * 4 + x) * 4 + 2 * j
                a(f"v_lshlrev_b32 v{d}, 16, v{16 + 2 * w + j}")
                a(f"v_and_b32 v{d + 1}, s39, v{16 + 2 * w + j}")
    form = dict(
        mfma=[(w * 4 + x, w, x, True) for wg in range(2) for x in range(4) for w in range(wg * 4, wg * 4 + 4)],
        wread=lambda wi, ks, r: (wi & 3, (wi >> 2) * 4096 + r * 512),
        xread=lambda xi, ks: (0, xi * 1024),
    )
    stamp(a, 1)
    consumer(a, [(form, NK)], 1, lambda gs, wi: 16 + wi * 4, lambda gs, xi: 48 + xi * 4, lambda ai: ACC + ai * 4,
             (spw, lambda b, v: 4 + 6 * v + b), (spx, lambda b, v: 8 + v), g["NS"], STAGE, "g2c", env("LEAD2", 16))
    stamp(a, 2)
    dbg(a, 1, 3, 60)
    c1 = -2.0 * 1.4426950408889634 * 0.7978845608028654
    c2 = c1 * 0.044715
    a(f"s_mov_b32 s46, {f2u(c1):#x}")
    a(f"s_mov_b32 s48, {f2u(c2):#x}")
    a(f"s_mov_b32 s49, {f2u(c2):#x}")
    a("s_mul_i32 s37, s33, 112")
    a("s_lshl_b32 s38, s32, 3")
    a("s_add_u32 s37, s37, s38")
    a("s_lshl_b32 s38, s35, 2")
    a("s_add_u32 s37, s37, s38")
    a("s_lshl_b32 s37, s37, 13")
    a("s_lshl_b32 s38, s36, 12")
    a("s_add_u32 s37, s37, s38")
    a("v_lshlrev_b32 v2, 4, v1")
    a("v_mov_b32 v4, s46")
    a("v_mov_b32 v5, s46")
    a("s_nop 7")
    n = 0
    for m in range(4):
        for x in range(4):
            src = [ACC + ((2 * m + t) * 4 + x) * 4 + 2 * h for t in range(2) for h in range(2)]
            tb = 16 + (n & 1) * 16
            n += 1
            for p in range(4):
                a(f"v_pk_mul_f32 {vr(tb + 2 * p, 2)}, {vr(src[p], 2)}, {vr(src[p], 2)}")
            for p in range(4):
                a(f"v_pk_fma_f32 {vr(tb + 2 * p, 2)}, {vr(tb + 2 * p, 2)}, s[48:49], v[4:5]")
            for p in range(4):
                a(f"v_pk_mul_f32 {vr(tb + 2 * p, 2)}, {vr(tb + 2 * p, 2)}, {vr(src[p], 2)}")
            for p in range(8):
                a(f"v_exp_f32 v{tb + p}, v{tb + p}")
            for p in range(4):
                a(f"v_pk_add_f32 {vr(tb + 2 * p, 2)}, {vr(tb + 2 * p, 2)}, 1.0 op_sel_hi:[1,0]")
            for p in range(8):
                a(f"v_rcp_f32 v{tb + p}, v{tb + p}")
            for p in range(4):
                a(f"v_pk_mul_f32 {vr(tb + 2 * p, 2)}, {vr(tb + 2 * p, 2)}, {vr(src[p], 2)}")
            for p in range(4):
                a(f"v_cvt_pk_bf16_f32 v{tb + 8 + p}, v{tb + 2 * p}, v{tb + 2 * p + 1}")
            if x == 0:
                a(f"s_add_u32 s38, s37, {m * 8192}")
            a(f"buffer_store_dwordx4 {vr(tb + 8, 4)}, v2, s[16:19], s38 offen offset:{x * 1024}")
    if STAMP:
        a("s_waitcnt vmcnt(0)")
    stamp(a, 3)
    stamp_store(a, 6, 1, 4)
    dbg(a, 1, 4, 60, True)
    a("s_endpgm")
    a.label("g2_prod")
    a("s_sub_u32 s3, s3, 4")
    make_srd(a, 12, 8, 0, 2048 * 3584 * 2)
    make_srd(a, 16, 6, WS_HT, SZ_HT)
    ldw = 3584 * 2
    a("s_and_b32 s45, s3, 1")
    a("s_lshl_b32 s45, s45, 1")
    w_lane_goff(a, 4, 1, ldw, 2, 3, "nat", "s45")
    for cb in range(1, 4):
        a(f"v_add_u32 v{4 + cb}, {cb * 128}, v4")
    a("v_lshlrev_b32 v8, 4, v1")
    a(f"s_mul_i32 s35, s3, {8 * ldw}")
    a("s_lshl_b32 s36, s32, 9")
    a("s_add_u32 s35, s35, s36")
    a("s_lshl_b32 s36, s33, 19")
    a("s_lshl_b32 s37, s3, 11")
    a("s_add_u32 s36, s36, s37")
    a("s_lshl_b32 s38, s3, 10")
    a(f"s_add_u32 s39, s37, {g['WB']}")
    a("s_mov_b32 s40, 0")

    make_srd(a, 56, 62, 0, 3584 * 2048 * 2)
    a("s_lshl_b32 s61, s32, 3")
    a("s_add_u32 s61, s61, s33")
    a("s_lshl_b32 s61, s61, 2")
    a("s_add_u32 s61, s61, s3")
    a(f"s_mul_i32 s61, s61, {64 * ST2 * 64}")
    a(f"s_add_u32 s61, s61, {PF_K2_W2}")

    def issue2():
        for cb in range(4):
            a("s_add_u32 m0, s40, s38" if cb == 0 else "s_add_u32 m0, m0, 4096")
            a("s_nop 0")
            a(f"buffer_load_dwordx4 v{4 + cb}, s[12:15], s35 offen lds")
        a("s_add_u32 m0, s40, s39")
        a(f"s_add_u32 s35, s35, {g['BK'] * ldw}")
        a("buffer_load_dwordx4 v8, s[16:19], s36 offen lds")
        a("buffer_load_dwordx4 v8, s[16:19], s36 offen offset:1024 lds")
        stouch(a, ST2)
        a(f"s_add_u32 s36, s36, {g['XB']}")
        a(f"s_add_u32 s40, s40, {STAGE}")
        a(f"s_cmp_eq_u32 s40, {STAGE * g['NS']}")
        a("s_cselect_b32 s40, 0, s40")

    tl = Asm()
    tl("v_lshlrev_b32 v9, 7, v1")
    tl("s_lshl_b32 s61, s32, 3")
    tl("s_add_u32 s61, s61, s33")
    tl("s_lshl_b32 s61, s61, 2")
    tl("s_add_u32 s61, s61, s3")
    tl("s_lshl_b32 s61, s61, 13")
    tl(f"s_add_u32 s61, s61, {PF_K2_W2}")
    for i in range(G2T):
        tl("buffer_load_dword v10, v9, s[56:59], s61 offen")
        tl(f"s_add_u32 s61, s61, {448 * 8192}")
    producer_run(a, issue2, 6, g["NS"], g["LAG"], NK, 44, "g2", tail=tl.lines(), ntail=G2T)
    a("s_endpgm")

    a.label("g1_entry")
    g = G1
    STAGE = g["WB"] + g["XB"]
    NK = 1024 // g["BK"]
    if K2MAP == 0:
        a("s_sub_u32 s31, s31, 14")
        a("s_and_b32 s32, s30, 3")
        a("s_lshl_b32 s32, s32, 2")
        a("s_and_b32 s33, s31, 3")
        a("s_add_u32 s32, s32, s33")
        a("s_lshr_b32 s33, s30, 2")
        a("s_lshl_b32 s33, s33, 2")
        a("s_lshr_b32 s34, s31, 2")
        a("s_add_u32 s33, s33, s34")
    elif K2MAP == 1:
        a("s_and_b32 s32, s30, 1")
        a("s_lshl_b32 s32, s32, 3")
        a("s_and_b32 s33, s31, 7")
        a("s_add_u32 s32, s32, s33")
        a("s_lshr_b32 s33, s30, 1")
        a("s_lshl_b32 s33, s33, 2")
        a("s_lshr_b32 s34, s31, 3")
        a("s_add_u32 s33, s33, s34")
    else:
        a("s_lshl_b32 s32, s30, 2")
        a("s_and_b32 s33, s31, 3")
        a("s_add_u32 s32, s32, s33")
        a("s_lshr_b32 s33, s31, 2")
    stamp(a, 0)
    a("s_cmp_ge_u32 s3, 4")
    a("s_cbranch_scc1 g1_prod")
    a("s_and_b32 s35, s3, 1")
    a("s_lshr_b32 s36, s3, 1")
    w_lane_laddr(a, 4, 1, "nat", 6, 7)
    a("s_lshl_b32 s38, s35, 6")
    a("v_xor_b32 v4, s38, v4")
    a("v_xor_b32 v5, 32, v4")
    a("v_lshlrev_b32 v6, 4, v1")
    a("s_lshl_b32 s38, s36, 13")
    a(f"s_add_u32 s38, s38, {g['WB']}")
    a("v_add_u32 v6, s38, v6")
    spw, nvw = variants(8192 + 512, g["NS"], STAGE)
    spx, nvx = variants(7168, g["NS"], STAGE)
    assert nvw <= 3 and nvx == 2
    for v in range(1, nvw):
        for b in range(2):
            a(f"v_add_u32 v{4 - 2 * v + b}, {v * spw * STAGE}, v{4 + b}")
    a(f"v_add_u32 v7, {spx * STAGE}, v6")
    ACC = 64
    form = dict(
        mfma=[(w * 8 + x, w, x, w < 4) for xp in range(4) for w in range(6) for x in (2 * xp, 2 * xp + 1)],
        wread=lambda wi, ks, r: (wi & 1, (wi >> 1) * 4096 + r * 512),
        xread=lambda xi, ks: (0, xi * 1024),
    )
    consumer(a, [(form, NK)], 1, lambda gs, wi: 8 + wi * 4, lambda gs, xi: 32 + xi * 4, lambda ai: ACC + ai * 4,
             (spw, lambda b, v: 4 - 2 * v + b), (spx, lambda b, v: 6 + v), g["NS"], STAGE, "g1c", env("LEAD1", 16), zero_c=True)
    a("v_mbcnt_lo_u32_b32 v1, -1, 0")
    a("v_mbcnt_hi_u32_b32 v1, -1, v1")
    stamp(a, 1)
    dbg(a, 1, 5, 60)
    a("s_barrier")
    sc = (32 ** -0.5) * 1.4426950408889634
    a(f"s_mov_b32 s46, {f2u(sc):#x}")
    a(f"s_mov_b32 s47, {f2u(sc):#x}")
    a("v_lshrrev_b32 v2, 4, v1")
    a("v_and_b32 v3, 15, v1")
    a("v_lshlrev_b32 v3, 4, v3")
    a("v_lshl_add_u32 v4, v2, 9, v3")
    a("v_and_b32 v5, 1, v2")
    a("v_lshl_add_u32 v5, v5, 9, v3")
    a("v_lshrrev_b32 v2, 1, v2")
    a("v_lshl_add_u32 v5, v2, 8, v5")
    a("s_lshl_b32 s38, s35, 16")
    a("s_lshl_b32 s39, s36, 13")
    a("s_add_u32 s38, s38, s39")
    a(f"s_add_u32 s38, s38, 16384")
    a(f"v_add_u32 v6, s38, v4")
    a(f"s_add_u32 s38, s38, {AT_V}")
    a("v_add_u32 v7, s38, v5")
    a("s_lshl_b32 s38, s35, 14")
    a("s_add_u32 s38, s38, s39")
    a(f"s_add_u32 s38, s38, {AT_Q}")
    a("v_add_u32 v0, s38, v4")
    n = 0
    for x in range(8):
        off = (x >> 1) * 2048 + (x & 1) * 256
        offv = (x >> 1) * 2048 + (x & 1) * 1024
        tv, tb, tq = [8 + ((n + k) % 12) * 4 for k in range(3)]
        n += 3
        for dt in range(2):
            t0 = ACC + ((4 + dt) * 8 + x) * 4
            a(f"v_cvt_pk_bf16_f32 v{tv + 2 * dt}, v{t0}, v{t0 + 1}")
            a(f"v_cvt_pk_bf16_f32 v{tv + 2 * dt + 1}, v{t0 + 2}, v{t0 + 3}")
        t0, t1 = ACC + (2 * 8 + x) * 4, ACC + (3 * 8 + x) * 4
        a(f"v_cvt_pk_bf16_f32 v{tb}, v{t0}, v{t0 + 1}")
        a(f"v_cvt_pk_bf16_f32 v{tb + 1}, v{t0 + 2}, v{t0 + 3}")
        a(f"v_cvt_pk_bf16_f32 v{tb + 2}, v{t1}, v{t1 + 1}")
        a(f"v_cvt_pk_bf16_f32 v{tb + 3}, v{t1 + 2}, v{t1 + 3}")
        a(f"v_permlane32_swap_b32 v{tv}, v{tv + 2}")
        a(f"v_permlane32_swap_b32 v{tv + 1}, v{tv + 3}")
        a(f"ds_write_b128 v6, {vr(tb, 4)} offset:{off}")
        t0, t1 = ACC + x * 4, ACC + (8 + x) * 4
        for t in (t0, t0 + 2, t1, t1 + 2):
            a(f"v_pk_mul_f32 {vr(t, 2)}, {vr(t, 2)}, s[46:47]")
        a(f"ds_write_b128 v7, {vr(tv, 4)} offset:{offv}")
        a(f"v_cvt_pk_bf16_f32 v{tq}, v{t0}, v{t0 + 1}")
        a(f"v_cvt_pk_bf16_f32 v{tq + 1}, v{t0 + 2}, v{t0 + 3}")
        a(f"v_cvt_pk_bf16_f32 v{tq + 2}, v{t1}, v{t1 + 1}")
        a(f"v_cvt_pk_bf16_f32 v{tq + 3}, v{t1 + 2}, v{t1 + 3}")
        a(f"ds_write_b128 v0, {vr(tq, 4)} offset:{off}")
    a("s_branch g1_att")
    a.label("g1_prod")
    a("s_sub_u32 s45, s3, 4")
    make_srd(a, 12, 4, 0, 1024 * 3072 * 2)
    make_srd(a, 16, 6, WS_XN, SZ_XN)
    ldw = 3072 * 2
    a("s_and_b32 s46, s3, 1")
    a("s_lshl_b32 s46, s46, 1")
    w_lane_goff(a, 4, 1, ldw, 2, 3, "nat", "s46")
    a("v_add_u32 v5, 2048, v4")
    a("v_add_u32 v6, 4096, v4")
    a("v_lshlrev_b32 v8, 4, v1")
    a(f"s_mul_i32 s35, s45, {8 * ldw}")
    a("s_lshl_b32 s36, s32, 7")
    a("s_add_u32 s35, s35, s36")
    a("s_lshl_b32 s36, s33, 19")
    a("s_lshl_b32 s37, s45, 12")
    a("s_add_u32 s36, s36, s37")
    a("s_lshl_b32 s38, s45, 10")
    a(f"s_add_u32 s39, s37, {g['WB']}")
    a("s_mov_b32 s40, 0")

    make_srd(a, 56, 62, 0, 3584 * 2048 * 2)
    a("s_lshl_b32 s61, s32, 3")
    a("s_add_u32 s61, s61, s33")
    a("s_lshl_b32 s61, s61, 2")
    a("s_add_u32 s61, s61, s45")
    a(f"s_mul_i32 s61, s61, {32 * ST1 * 64}")
    a(f"s_add_u32 s61, s61, {PF_K2_W2 + 448 * 64 * ST2 * 64}")

    def issue1():
        for cb in range(3):
            a("s_add_u32 m0, s40, s38" if cb == 0 else "s_add_u32 m0, m0, 4096")
            a("s_nop 0")
            a(f"buffer_load_dwordx4 v{4 + cb}, s[12:15], s35 offen lds")
        a("s_add_u32 m0, s40, s39")
        a(f"s_add_u32 s35, s35, {g['BK'] * ldw}")
        for p in range(4):
            a(f"buffer_load_dwordx4 v8, s[16:19], s36 offen offset:{p * 1024} lds")
        stouch(a, ST1)
        a(f"s_add_u32 s36, s36, {g['XB']}")
        a(f"s_add_u32 s40, s40, {STAGE}")
        a(f"s_cmp_eq_u32 s40, {STAGE * g['NS']}")
        a("s_cselect_b32 s40, 0, s40")

    tl = Asm()
    tl("v_lshlrev_b32 v9, 7, v1")
    tl("s_lshl_b32 s61, s45, 13")
    nt = code_touch(tl, "g1_att", "k2_pf", 48, 9, 10, 1, "s61")
    producer_run(a, issue1, 7, g["NS"], g["LAG"], NK, 44, "g1", tail=tl.lines(), ntail=nt)
    stamp(a, 1)
    a("s_barrier")
    a("s_waitcnt vmcnt(0)")
    a.label("g1_att")
    gen_att(a)
    a.label("k2_pf")
    a(f"s_load_dwordx2 s[20:21], s[0:1], {A_WO}")
    a(f"s_load_dwordx2 s[22:23], s[0:1], {B_W2}")
    if K2MAP == 0:
        a("s_sub_u32 s32, s2, 240")
    else:
        a("s_sub_u32 s32, s31, 28")
        a("s_lshl_b32 s32, s32, 2")
        a("s_add_u32 s32, s32, s30")
        a("s_sub_u32 s32, s32, 4")
    a("s_lshl_b32 s32, s32, 3")
    a("s_add_u32 s32, s32, s3")
    a("s_lshl_b32 s32, s32, 13")
    a("v_lshlrev_b32 v2, 7, v1")
    make_srd(a, 12, 4, 0, 1024 * 3072 * 2)
    make_srd(a, 16, 8, 0, 2048 * 3584 * 2)
    a(f"s_add_u32 s33, s32, {PF_LN_QKV}")
    a(f"s_add_u32 s34, s32, {PF_LN_W1}")
    nq = -(-(1024 * 3072 * 2 - PF_LN_QKV) // MB)
    n1 = -(-(2048 * 3584 * 2 - PF_LN_W1) // MB)
    i1 = 0
    for i in range(max(nq, (n1 + 1) // 2)):
        if i < nq:
            a("buffer_load_dword v3, v2, s[12:15], s33 offen"); a("s_barrier")
            a(f"s_add_u32 s33, s33, {MB}")
        for _ in range(2):
            if i1 < n1:
                a("buffer_load_dword v3, v2, s[16:19], s34 offen"); a("s_barrier")
                a(f"s_add_u32 s34, s34, {MB}")
                i1 += 1
    a("s_waitcnt lgkmcnt(0)")
    if PF_K2_W2:
        make_srd(a, 12, 22, 0, PF_K2_W2)
        a("s_mov_b32 s33, s32")
        for i in range(-(-PF_K2_W2 // MB)):
            a("buffer_load_dword v3, v2, s[12:15], s33 offen"); a("s_barrier")
            a(f"s_add_u32 s33, s33, {MB}")
    if PF_ATT == 0:
        make_srd(a, 16, 20, 0, 1024 * 1024 * 2)
        a("buffer_load_dword v3, v2, s[16:19], s32 offen")
        a(f"s_add_u32 s32, s32, {MB}")
        a("buffer_load_dword v3, v2, s[16:19], s32 offen")
    dbg(a, 1, 7, 60, True)
    a.label("k2_done")
    a("s_endpgm")
    kernel_desc(a, name, 256)


def gen_att(a):
    make_srd(a, 12, 6, WS_KV, SZ_KV)
    make_srd(a, 16, 6, WS_FLG, SZ_FLG)
    make_srd(a, 20, 6, WS_O, SZ_O)
    a("v_lshlrev_b32 v3, 4, v1")
    a("s_and_b32 s34, s3, 1")
    a("s_lshr_b32 s35, s3, 1")
    a("s_sub_u32 s36, 7, s35")
    a("s_lshl_b32 s37, s32, 3")
    a("s_add_u32 s37, s37, s33")
    a("s_lshl_b32 s39, s37, 7")
    a("s_lshl_b32 s40, s3, 2")
    a("s_add_u32 s39, s39, s40")
    a("s_sub_u32 s40, s39, 128")
    a("s_lshr_b32 s41, s3, 1")
    a("s_lshl_b32 s41, s41, 15")
    a("s_lshl_b32 s42, s34, 13")
    a("s_add_u32 s41, s41, s42")
    a("s_lshl_b32 s42, s37, 16")
    a("s_lshl_b32 s43, s3, 13")
    a("s_add_u32 s42, s42, s43")
    a("s_add_u32 s43, s41, 16384")
    a("v_add_u32 v0, s43, v3")
    a("v_and_b32 v5, 31, v1")
    a("v_lshrrev_b32 v6, 5, v1")
    a("v_lshlrev_b32 v6, 2, v6")
    a("v_sub_u32 v5, v5, v6")
    S, P, FR, AD = 64, 240, 24, 48
    T = dict(a=dict(Q=8, O=208, M=58, L=62, j="s35"), b=dict(Q=16, O=224, M=60, L=6, j="s36"))
    a("s_lshl_b32 s43, s34, 16")
    a("v_add_u32 v4, s43, v3")
    a("v_and_b32 v2, 15, v1")
    a("v_lshlrev_b32 v2, 4, v2")
    a("v_bfe_u32 v57, v1, 4, 1")
    a("v_lshl_add_u32 v2, v57, 10, v2")
    a("v_lshrrev_b32 v57, 5, v1")
    a("v_lshl_add_u32 v2, v57, 8, v2")
    a("s_lshl_b32 s43, s34, 14")
    a(f"s_add_u32 s43, s43, {AT_Q}")
    a("s_lshl_b32 s44, s35, 11")
    a("s_add_u32 s44, s44, s43")
    a("v_add_u32 v56, s44, v3")
    a("s_lshl_b32 s44, s36, 11")
    a("s_add_u32 s44, s44, s43")
    a("v_add_u32 v57, s44, v3")
    for t in T.values():
        for i in range(16):
            a(f"v_mov_b32 v{t['O'] + i}, 0")
        a(f"v_mov_b32 v{t['L']}, 0")
        a(f"v_mov_b32 v{t['L'] + 1}, 0")
        a(f"v_mov_b32 v{t['M']}, 0xff800000")
    a("v_mov_b32 v1, 0")
    a("s_mov_b32 s38, 0")
    a("s_add_u32 s43, s42, 4096")
    a("s_waitcnt lgkmcnt(0)")
    a("s_barrier")
    stamp(a, 2)
    for p in range(8):
        a(f"ds_read_b128 {vr(S + 16 + 4 * p, 4)}, v0 offset:{p * 1024}")
    a(f"ds_read_b128 {vr(8, 4)}, v56")
    a(f"ds_read_b128 {vr(12, 4)}, v56 offset:1024")
    a(f"ds_read_b128 {vr(16, 4)}, v57")
    a(f"ds_read_b128 {vr(20, 4)}, v57 offset:1024")
    for p in range(8):
        a(f"s_waitcnt lgkmcnt({11 - p})")
        a(f"buffer_store_dwordx4 {vr(S + 16 + 4 * p, 4)}, v3, s[12:15], {'s42' if p < 4 else 's43'} offen offset:{(p & 3) * 1024} sc1")
    a.label("att_part")
    a("s_cmp_eq_u32 s38, 0")
    a("s_add_u32 s44, s35, 1")
    a("s_sub_u32 s45, 8, s35")
    a("s_cmp_eq_u32 s38, 0")
    a("s_cselect_b32 s44, s44, s45")
    a("s_cselect_b32 s46, 8, 0")
    a("s_add_u32 s46, s46, s35")
    a("s_cmp_eq_u32 s38, 0")
    a("s_cselect_b32 s47, 0, 8")
    a("s_add_u32 s47, s47, s36")
    a("s_cmp_eq_u32 s38, 0")
    a("s_cselect_b32 s48, -1, 1")
    a("s_cselect_b32 s50, 0, 0xff800000")
    a("s_cselect_b32 s51, 0xff800000, 0")
    a("s_lshl_b32 s46, s46, 11")
    a("s_lshl_b32 s47, s47, 11")
    a("s_lshl_b32 s48, s48, 11")
    for i in range(9):
        a(f"s_cmp_gt_u32 s44, {i}")
        a("s_cselect_b32 s49, s46, s47")
        a(f"v_add_u32 v{AD + i}, s49, v4")
        a("s_add_u32 s46, s46, s48")
        a("s_sub_u32 s47, s47, s48")
        if i < 2:
            a(f"ds_read_b128 {vr(FR + 8 * i, 4)}, v{AD + i}")
            a(f"ds_read_b128 {vr(FR + 8 * i + 4, 4)}, v{AD + i} offset:1024")
    a(f"v_mov_b32 v{P}, s50")
    a(f"v_mov_b32 v{P + 1}, s51")
    for i in range(0, 16, 2):
        for k in range(2):
            b = ((i + k) >> 2) * 8 + ((i + k) & 3)
            a(f"v_cmp_gt_i32 s[{52 + 2 * k}:{53 + 2 * k}], {b}, v5")
        a("s_nop 0")
        for k in range(2):
            a(f"v_cndmask_b32 v{S + i + k}, v{P}, v{P + 1}, s[{52 + 2 * k}:{53 + 2 * k}]")
            a(f"v_cndmask_b32 v{S + 128 + i + k}, v{P}, v{P + 1}, s[{52 + 2 * k}:{53 + 2 * k}]")

    def slotmax(i):
        sb, m = S + 16 * i, P + 2 + i
        a(f"v_max3_f32 v{m}, v{sb}, v{sb + 1}, v{sb + 2}")
        a(f"v_max3_f32 v{P}, v{sb + 3}, v{sb + 4}, v{sb + 5}")
        for k in range(6, 14, 4):
            a(f"v_max3_f32 v{m}, v{m}, v{sb + k}, v{sb + k + 1}")
            a(f"v_max3_f32 v{P}, v{P}, v{sb + k + 2}, v{sb + k + 3}")
        a(f"v_max3_f32 v{m}, v{m}, v{sb + 14}, v{sb + 15}")
        a(f"v_max_f32 v{m}, v{m}, v{P}")

    def two_versions(tag, body, first_b=1, last_a=7):
        for i in range(0, last_a + 1):
            body("a", i)
            if i < last_a:
                a(f"s_cmp_eq_u32 s44, {i + 1}")
                a(f"s_cbranch_scc1 {tag}_b{i + 1}")
        a(f"s_branch {tag}_b{last_a + 1}")
        for i in range(first_b, 9):
            a.label(f"{tag}_b{i}")
            body("b", i)

    def qk(ver, i):
        Q = T[ver]["Q"]
        kf = FR + (i % 3) * 8
        if i + 2 < 9:
            nf = FR + ((i + 2) % 3) * 8
            a(f"ds_read_b128 {vr(nf, 4)}, v{AD + i + 2}")
            a(f"ds_read_b128 {vr(nf + 4, 4)}, v{AD + i + 2} offset:1024")
        a(f"s_waitcnt lgkmcnt({2 * min(2, 8 - i)})")
        sj = vr(S + 16 * i, 16)
        a(f"v_mfma_f32_32x32x16_bf16 {sj}, {vr(kf, 4)}, {vr(Q, 4)}, {sj if i in (0, 8) else '0'}")
        a(f"v_mfma_f32_32x32x16_bf16 {sj}, {vr(kf + 4, 4)}, {vr(Q + 4, 4)}, {sj}")
        if i >= 2:
            slotmax(i - 2)

    if True:
        a("s_waitcnt vmcnt(0) lgkmcnt(4)") if False else None
    two_versions("aqk", qk)

    def vread(i):
        b = FR + (i % 3) * 8
        a(f"ds_read_b128 {vr(b, 4)}, v{AD + i} offset:{AT_V}")
        a(f"ds_read_b128 {vr(b + 4, 4)}, v{AD + i} offset:{AT_V + 1024}")

    slotmax(7)
    vread(0)
    vread(1)
    slotmax(8)
    vread(2)
    MA_, MB_ = P + 12, P + 14
    a(f"v_mov_b32 v{MA_}, v{T['a']['M']}")
    a(f"v_mov_b32 v{MB_}, v{T['b']['M']}")
    two_versions("amx", lambda ver, i: a(f"v_max_f32 v{MA_ if ver == 'a' else MB_}, v{MA_ if ver == 'a' else MB_}, v{P + 2 + i}"))
    a(f"v_mov_b32 v{MA_ + 1}, v{MA_}")
    a(f"v_mov_b32 v{MB_ + 1}, v{MB_}")
    a("s_nop 1")
    a(f"v_permlane32_swap_b32 v{MA_}, v{MA_ + 1}")
    a(f"v_permlane32_swap_b32 v{MB_}, v{MB_ + 1}")
    a("s_nop 1")
    for t, m in ((T["a"], MA_), (T["b"], MB_)):
        a(f"v_max_f32 v{m}, v{m}, v{m + 1}")
        a(f"v_sub_f32 v{m + 1}, v{t['M']}, v{m}")
        a(f"v_exp_f32 v{m + 1}, v{m + 1}")
        a(f"v_mov_b32 v{t['M']}, v{m}")
    a("s_cmp_eq_u32 s38, 0")
    a("s_cbranch_scc1 att_sp1")
    for t, m in ((T["a"], MA_), (T["b"], MB_)):
        for i in range(0, 16, 2):
            a(f"v_pk_mul_f32 {vr(t['O'] + i, 2)}, {vr(t['O'] + i, 2)}, {vr(m, 2)} op_sel:[0,1] op_sel_hi:[1,1]")
        a(f"v_pk_mul_f32 {vr(t['L'], 2)}, {vr(t['L'], 2)}, {vr(m, 2)} op_sel:[0,1] op_sel_hi:[1,1]")
    a("s_branch att_sp1x")
    a.label("att_sp1")
    a(f"v_mov_b32 v{P}, 1")
    a("s_waitcnt vmcnt(0)")
    a(f"buffer_store_dword v{P}, v1, s[16:19], s39 offen sc1")
    stamp(a, 3)
    a.label("att_sp1x")
    SP2 = env("SP2", 4)

    def ex(ver, i):
        t = T[ver]
        sb = S + 16 * i
        pb = P + (i & 1) * 8
        if i == SP2:
            a("s_or_b32 s49, s38, 0")
            a(f"s_cbranch_scc1 att_sp2x{ver}")
            a("s_cmp_eq_u32 s33, 0")
            a(f"s_cbranch_scc1 att_sp2x{ver}")
            a("s_mov_b32 s49, 0")
            a.label(f"att_poll{ver}")
            a(f"buffer_load_dword v57, v1, s[16:19], s40 offen sc1")
            a("s_waitcnt vmcnt(0)")
            a("v_cmp_ne_u32 vcc, 0, v57")
            a(f"s_cbranch_vccnz att_got{ver}")
            a("s_sleep 1")
            a("s_add_u32 s49, s49, 1")
            a(f"s_cmp_lt_u32 s49, {SPIN_MAX}")
            a(f"s_cbranch_scc1 att_poll{ver}")
            a.label(f"att_got{ver}")
            for hh in range(2):
                a(f"s_add_u32 m0, s41, {hh * 4096}")
                a(f"s_sub_u32 s49, s42, {0x10000 - hh * 4096}")
                for p in range(4):
                    a(f"buffer_load_dwordx4 v3, s[12:15], s49 offen offset:{p * 1024} sc1 lds")
            a.label(f"att_sp2x{ver}")
        for k in range(0, 16, 2):
            a(f"v_pk_add_f32 {vr(sb + k, 2)}, {vr(sb + k, 2)}, {vr(t['M'], 2)} op_sel_hi:[1,0] neg_lo:[0,1] neg_hi:[0,1]")
        for k in range(16):
            a(f"v_exp_f32 v{sb + k}, v{sb + k}")
        for k in range(8):
            a(f"v_cvt_pk_bf16_f32 v{pb + k}, v{sb + 2 * k}, v{sb + 2 * k + 1}")
        for k in range(0, 16, 2):
            a(f"v_pk_add_f32 {vr(t['L'], 2)}, {vr(t['L'], 2)}, {vr(sb + k, 2)}")
        vb = FR + (i % 3) * 8
        a(f"s_waitcnt lgkmcnt({2 * min(2, 8 - i)})")
        a(f"v_mfma_f32_32x32x16_bf16 {vr(t['O'], 16)}, {vr(vb, 4)}, {vr(pb, 4)}, {vr(t['O'], 16)}")
        a(f"v_mfma_f32_32x32x16_bf16 {vr(t['O'], 16)}, {vr(vb + 4, 4)}, {vr(pb + 4, 4)}, {vr(t['O'], 16)}")
        if i + 3 < 9:
            vread(i + 3)

    two_versions("aex", ex)
    a("s_cmp_lg_u32 s38, 0")
    a("s_cbranch_scc1 att_fin")
    stamp(a, 4)
    a("s_waitcnt vmcnt(0)")
    a("s_barrier")
    stamp(a, 5)
    a("s_mov_b32 s38, 1")
    a("s_cmp_lg_u32 s33, 0")
    a("s_cbranch_scc1 att_part")
    a.label("att_fin")
    for t, pk in ((T["a"], 24), (T["b"], 32)):
        L = t['L']
        a(f"v_add_f32 v{L}, v{L}, v{L + 1}")
        a(f"v_mov_b32 v{L + 1}, v{L}")
        a("s_nop 1")
        a(f"v_permlane32_swap_b32 v{L}, v{L + 1}")
        a("s_nop 1")
        a(f"v_add_f32 v{L}, v{L}, v{L + 1}")
        a(f"v_rcp_f32 v{L}, v{L}")
        a("s_lshl_b32 s43, s33, 3")
        a(f"s_add_u32 s43, s43, {t['j']}")
        a("s_lshr_b32 s44, s43, 2")
        a("s_lshl_b32 s44, s44, 5")
        a("s_lshl_b32 s45, s32, 1")
        a("s_add_u32 s44, s44, s45")
        a("s_add_u32 s44, s44, s34")
        a("s_lshl_b32 s44, s44, 13")
        a("s_and_b32 s43, s43, 3")
        a("s_lshl_b32 s43, s43, 11")
        a("s_add_u32 s44, s44, s43")
        for i in range(0, 16, 2):
            a(f"v_pk_mul_f32 {vr(t['O'] + i, 2)}, {vr(t['O'] + i, 2)}, {vr(L, 2)} op_sel_hi:[1,0]")
        for i in range(8):
            a(f"v_cvt_pk_bf16_f32 v{pk + i}, v{t['O'] + 2 * i}, v{t['O'] + 2 * i + 1}")
        a(f"buffer_store_dwordx4 {vr(pk, 4)}, v2, s[20:23], s44 offen")
        a(f"buffer_store_dwordx4 {vr(pk + 4, 4)}, v2, s[20:23], s44 offen offset:512")
    stamp(a, 6)
    stamp_store(a, 6, 1, 7)
    dbg(a, 1, 6, 60, True)
    a("s_endpgm")


G3 = dict(BK=64, NS=5, LAG=1, WB=16384, XB=16384)
K3_LDS = G3["NS"] * (G3["WB"] + G3["XB"])
NKA = 36


def gen_k3(a):
    name = "k3_kernel"
    g = G3
    STAGE = g["WB"] + g["XB"]
    kernel_begin(a, name)
    a("s_cmp_ge_u32 s2, 256")
    a("s_cbranch_scc1 k3_done")
    if DBG:
        a("s_cmp_lg_u32 s2, 0")
        a("s_cbranch_scc1 k3_d0")
        dbg(a, 2, 8, 40)
        a("s_waitcnt vmcnt(0)")
        a.label("k3_d0")
    a(f"s_load_dwordx2 s[4:5], s[0:1], {A_X}")
    a(f"s_load_dwordx2 s[6:7], s[0:1], {A_WO}")
    a(f"s_load_dwordx4 s[8:11], s[0:1], {B_W2}")
    a(f"s_load_dwordx2 s[24:25], s[0:1], {D_OUT}")
    a(f"s_load_dwordx2 s[26:27], s[0:1], {D_WS}")
    a("v_and_b32 v1, 63, v0")
    a("v_lshrrev_b32 v2, 6, v0")
    a("s_and_b32 s30, s2, 7")
    a("v_readfirstlane_b32 s3, v2")
    a("s_lshr_b32 s31, s2, 3")
    if K3MAP == 0:
        a("s_and_b32 s29, s31, 1")
        a("s_lshr_b32 s31, s31, 1")
        a("s_and_b32 s32, s30, 1")
        a("s_lshl_b32 s32, s32, 2")
        a("s_and_b32 s33, s31, 3")
        a("s_add_u32 s32, s32, s33")
        a("s_lshr_b32 s33, s30, 1")
        a("s_lshl_b32 s33, s33, 2")
        a("s_lshr_b32 s34, s31, 2")
        a("s_add_u32 s33, s33, s34")
    else:
        a("s_and_b32 s29, s30, 1")
        a("s_and_b32 s32, s31, 7")
        a("s_lshr_b32 s33, s30, 1")
        a("s_lshl_b32 s33, s33, 2")
        a("s_lshr_b32 s34, s31, 3")
        a("s_add_u32 s33, s33, s34")
    a("s_waitcnt lgkmcnt(0)")
    a("s_cmp_ge_u32 s3, 4")
    a("s_cbranch_scc1 k3_prod")
    stamp(a, 0)
    make_srd(a, 12, 4, 0, 4 * MB)
    make_srd(a, 16, 10, 0, 4096)
    make_srd(a, 20, 24, 0, 4 * MB)
    a("s_and_b32 s35, s3, 1")
    a("s_lshr_b32 s36, s3, 1")
    ACC = 128
    a("v_and_b32 v2, 15, v1")
    a("v_lshrrev_b32 v3, 4, v1")
    a("v_lshlrev_b32 v9, 11, v2")
    a("v_lshl_add_u32 v10, v3, 3, v9")
    a("v_and_b32 v11, 1, v3")
    a("v_lshl_add_u32 v9, v11, 5, v9")
    a("v_lshrrev_b32 v11, 1, v3")
    a("v_lshl_add_u32 v9, v11, 4, v9")
    a("v_lshlrev_b32 v2, 1, v2")
    a("s_lshl_b32 s37, s33, 7")
    a("s_lshl_b32 s38, s36, 6")
    a("s_add_u32 s37, s37, s38")
    a("s_lshl_b32 s38, s29, 5")
    a("s_add_u32 s37, s37, s38")
    a("s_lshl_b32 s39, s37, 1")
    a("s_lshl_b32 s37, s37, 11")
    a("s_lshl_b32 s38, s32, 8")
    a("s_add_u32 s37, s37, s38")
    a("s_lshl_b32 s38, s35, 7")
    a("s_add_u32 s37, s37, s38")
    a("s_add_u32 s38, s37, 0x8000")
    XT = 96
    for sh in range(2):
        for di in range(4):
            a(f"buffer_load_dwordx2 {vr(XT + (sh * 4 + di) * 2, 2)}, v10, s[12:15], s{37 + sh} offen offset:{di * 32}")
    a("buffer_load_ushort v112, v2, s[16:19], s39 offen")
    a("buffer_load_ushort v113, v2, s[16:19], s39 offen offset:32")
    w_lane_laddr(a, 4, 1, "p16", 2, 12)
    a("s_lshl_b32 s46, s36, 13")
    a("s_lshl_b32 s47, s35, 12")
    a("s_lshl_b32 s48, s35, 13")
    a("s_lshl_b32 s49, s36, 12")
    a("v_add_u32 v4, s46, v4")
    for sb in range(1, 4):
        a(f"v_xor_b32 v{4 + sb}, {sb * 32}, v4")
    a("v_lshlrev_b32 v8, 4, v1")
    a(f"s_add_u32 s50, s47, {g['WB']}")
    a("v_add_u32 v8, s50, v8")
    a("s_sub_u32 s48, s48, s46")
    a("s_sub_u32 s49, s49, s47")
    a("v_lshlrev_b32 v11, 10, v11")
    a("v_add_u32 v11, s48, v11")
    spw, nvw = variants(4096 + 2048, g["NS"], STAGE)
    spx, nvx = variants(8192 + 3072, g["NS"], STAGE)
    assert nvw == 3 and nvx == 3
    wreg = lambda b, v: (4 + b if v == 0 else 76 + 4 * v + b)
    xreg = lambda b, v: (8 if v == 0 else 87 + v)
    for v in range(1, 3):
        for sb in range(4):
            a(f"v_add_u32 v{wreg(sb, v)}, {v * spw * STAGE}, v{4 + sb}")
        a(f"v_add_u32 v{xreg(0, v)}, {v * spx * STAGE}, v8")
    formY = dict(mfma=[(si * 4 + di, si, di, False) for sp in range(2) for di in range(4) for si in (2 * sp, 2 * sp + 1)],
                 wread=lambda wi, ks, r: (wi, ks * 4096 + r * 2048),
                 xread=lambda xi, ks: (0, ks * 8192 + xi * 1024))
    formO = dict(mfma=[(si * 4 + di, di, si, True) for dp in range(2) for si in range(4) for di in (2 * dp, 2 * dp + 1)],
                 wread=lambda wi, ks, r: (wi, ks * 4096 + r * 1024),
                 xread=lambda xi, ks: (0, ks * 8192 + xi * 1024),
                 swW=[f"v_add_u32 v{wreg(sb, v)}, v11, v{wreg(sb, v)}" for sb in range(4) for v in range(3)],
                 swX=[f"v_add_u32 v{xreg(0, v)}, s49, v{xreg(0, v)}" for v in range(3)])
    sW = lambda gs, wi: 16 + ((gs & 1) * 8 + wi) * 4
    sX = lambda gs, xi: 16 + ((gs & 1) * 8 + 4 + xi) * 4
    stamp(a, 1)
    a("s_cmp_eq_u32 s29, 1")
    a("s_cbranch_scc1 k3_cb")
    consumer(a, [(formY, NKA)], 2, sW, sX, lambda ai: ACC + ai * 4, (spw, wreg), (spx, xreg), g["NS"], STAGE, "k3a", env("LEAD3", 16), zero_c=True)
    a("s_branch k3_cend")
    a.label("k3_cb")
    consumer(a, [(formY, 56 - NKA), (formO, 16)], 2, sW, sX, lambda ai: ACC + ai * 4, (spw, wreg), (spx, xreg), g["NS"], STAGE, "k3b", env("LEAD3", 16), zero_c=True)
    a("s_nop 7")
    for i in range(32):
        a(f"v_swap_b32 v{ACC + i}, v{ACC + 32 + i}")
    a.label("k3_cend")
    stamp(a, 2)
    dbg(a, 2, 9, 60, True)
    make_srd(a, 12, 26, WS_EX, SZ_EX)
    make_srd(a, 16, 26, WS_FLG + FLG_K3, SZ_FLG - FLG_K3)
    a("s_lshl_b32 s40, s2, 2")
    a("s_add_u32 s40, s40, s3")
    a(f"s_xor_b32 s41, s2, {8 if K3MAP == 0 else 1}")
    a("s_lshl_b32 s41, s41, 2")
    a("s_add_u32 s41, s41, s3")
    a("s_lshl_b32 s42, s40, 13")
    a("s_lshl_b32 s43, s41, 13")
    a("s_add_u32 s44, s42, 4096")
    a("s_add_u32 s45, s43, 4096")
    a("s_lshl_b32 s40, s40, 5")
    a("s_lshl_b32 s41, s41, 5")
    a("v_lshlrev_b32 v3, 4, v1")
    a("s_nop 4")
    for p in range(8):
        a(f"buffer_store_dwordx4 {vr(ACC + 32 + 4 * p, 4)}, v3, s[12:15], {'s42' if p < 4 else 's44'} offen offset:{(p & 3) * 1024} sc1")
    a("s_mov_b32 s39, 0xffff0000")
    a("s_waitcnt vmcnt(8)")
    a("v_lshlrev_b32 v112, 16, v112")
    a("v_lshlrev_b32 v113, 16, v113")
    for sh in range(2):
        for di in range(4):
            for j in range(2):
                src = XT + (sh * 4 + di) * 2 + j
                d = ACC + (sh * 4 + di) * 4 + 2 * j
                a(f"v_lshlrev_b32 v16, 16, v{src}")
                a(f"v_and_b32 v17, s39, v{src}")
                a(f"v_add_f32 v16, v16, v{112 + sh}")
                a(f"v_add_f32 v17, v17, v{112 + sh}")
                a(f"v_pk_add_f32 {vr(d, 2)}, {vr(d, 2)}, v[16:17]")
    a("v_mov_b32 v12, 1")
    a("v_mov_b32 v13, 0")
    a("s_waitcnt vmcnt(0)")
    a("buffer_store_dword v12, v13, s[16:19], s40 offen sc1")
    a("s_mov_b32 s46, 0")
    a.label("k3_poll")
    a("buffer_load_dword v14, v13, s[16:19], s41 offen sc1")
    a("s_waitcnt vmcnt(0)")
    a("v_cmp_ne_u32 vcc, 0, v14")
    a("s_cbranch_vccnz k3_got")
    a("s_sleep 1")
    a("s_add_u32 s46, s46, 1")
    a(f"s_cmp_lt_u32 s46, {SPIN_MAX}")
    a("s_cbranch_scc1 k3_poll")
    a.label("k3_got")
    stamp(a, 3)
    for p in range(8):
        a(f"buffer_load_dwordx4 {vr(16 + 4 * p, 4)}, v3, s[12:15], {'s43' if p < 4 else 's45'} offen offset:{(p & 3) * 1024} sc1")
    for sh in range(2):
        for dp in range(2):
            p0 = sh * 4 + dp * 2
            a(f"s_waitcnt vmcnt({6 - p0 + (sh * 2 + dp)})")
            for t in range(2):
                for j in range(2):
                    d = ACC + (p0 + t) * 4 + 2 * j
                    a(f"v_pk_add_f32 {vr(d, 2)}, {vr(d, 2)}, {vr(16 + (p0 + t) * 4 + 2 * j, 2)}")
            tb = 64 + (sh * 2 + dp) * 4
            for t in range(2):
                for j in range(2):
                    d = ACC + (p0 + t) * 4 + 2 * j
                    a(f"v_cvt_pk_bf16_f32 v{tb + 2 * t + j}, v{d}, v{d + 1}")
            a("s_nop 1")
            a(f"v_permlane16_swap_b32 v{tb}, v{tb + 2}")
            a(f"v_permlane16_swap_b32 v{tb + 1}, v{tb + 3}")
            a("s_nop 1")
            a(f"buffer_store_dwordx4 {vr(tb, 4)}, v9, s[20:23], s{37 + sh} offen offset:{dp * 64}")
    if STAMP:
        a("s_waitcnt vmcnt(0)")
    stamp(a, 4)
    stamp_store(a, 26, 3, 5)
    dbg(a, 2, 10, 60, True)
    a("s_endpgm")
    a.label("k3_prod")
    a("s_sub_u32 s3, s3, 4")
    make_srd(a, 12, 8, 0, 3584 * 2048 * 2)
    make_srd(a, 16, 26, WS_U, SZ_U)
    ldY, ldO = 4096, 2048
    w_lane_goff(a, 4, 1, ldY, 2, 3, "p")
    a("v_add_u32 v5, 128, v4")
    w_lane_goff(a, 6, 1, ldO, 2, 3, "p")
    a("v_add_u32 v7, 128, v6")
    a("v_lshlrev_b32 v8, 4, v1")
    a(f"s_mul_i32 s35, s3, {16 * ldY}")
    a("s_lshl_b32 s36, s33, 8")
    a("s_add_u32 s35, s35, s36")
    a(f"s_mul_i32 s36, s29, {NKA * 64 * ldY}")
    a("s_add_u32 s35, s35, s36")
    a(f"s_mul_i32 s36, s32, {112 * 8192}")
    a("s_lshl_b32 s37, s3, 12")
    a("s_add_u32 s36, s36, s37")
    a(f"s_mul_i32 s38, s29, {NKA * 16384}")
    a("s_add_u32 s36, s36, s38")
    a("s_lshl_b32 s38, s3, 11")
    a(f"s_add_u32 s39, s37, {g['WB']}")
    a("s_mov_b32 s40, 0")
    a(f"s_mov_b32 s41, {8 * ldY}")
    a(f"s_mov_b32 s42, {64 * ldY}")

    def issue3():
        a("s_add_u32 m0, s40, s38")
        a("s_add_u32 s43, s35, s41")
        a("buffer_load_dwordx4 v4, s[12:15], s35 offen lds")
        a("s_add_u32 m0, m0, 1024")
        a("s_nop 0")
        a("buffer_load_dwordx4 v4, s[12:15], s43 offen lds")
        a("s_add_u32 m0, m0, 8192")
        a("s_nop 0")
        a("buffer_load_dwordx4 v5, s[12:15], s43 offen lds")
        a("s_sub_u32 m0, m0, 1024")
        a("s_nop 0")
        a("buffer_load_dwordx4 v5, s[12:15], s35 offen lds")
        a("s_add_u32 m0, s40, s39")
        a("s_add_u32 s35, s35, s42")
        for p in range(4):
            a(f"buffer_load_dwordx4 v8, s[16:19], s36 offen offset:{p * 1024} lds")
        a(f"s_add_u32 s36, s36, {g['XB']}")
        a(f"s_add_u32 s40, s40, {STAGE}")
        a(f"s_cmp_eq_u32 s40, {STAGE * g['NS']}")
        a("s_cselect_b32 s40, 0, s40")

    b = Asm()
    b("s_cmp_eq_u32 s29, 0")
    b("s_cbranch_scc1 k3_nosw")
    make_srd(b, 12, 6, 0, 1024 * 1024 * 2)
    make_srd(b, 16, 26, WS_O, SZ_O)
    b("v_mov_b32 v4, v6")
    b("v_mov_b32 v5, v7")
    b(f"s_mul_i32 s35, s3, {16 * ldO}")
    b("s_lshl_b32 s36, s32, 8")
    b("s_add_u32 s35, s35, s36")
    b("s_lshl_b32 s36, s33, 18")
    b("s_add_u32 s36, s36, s37")
    b(f"s_mov_b32 s41, {8 * ldO}")
    b(f"s_mov_b32 s42, {64 * ldO}")
    b.label("k3_nosw")
    assert 56 - NKA + 16 == NKA
    producer_run(a, issue3, 8, g["NS"], g["LAG"], NKA, 44, "k3", switch=(56 - NKA, b.lines()))
    a.label("k3_done")
    a("s_endpgm")
    a.label("code_end")
    kernel_desc(a, name, 256)


HEADER = open("cdna_kernels/" + NAME + ".s.ref").read().split("; Override launch")[0]


def main(out):
    a = Asm()
    a.raw(HEADER.rstrip("\n"))
    E = env("EMPTY", "")
    el = "; @launch kernel=e_kernel grid=(256,1,1) block=(64,1,1) lds=0"
    for _ in range(E.count("0")):
        a.raw(el)
    a.raw(f"; @launch kernel=ln_kernel grid=(256,1,1) block=(512,1,1) lds={LN_LDS}")
    for _ in range(E.count("1")):
        a.raw(el)
    a.raw(f"; @launch kernel=k2_kernel grid=(256,1,1) block=(512,1,1) lds={K2_LDS}")
    a.raw(f"; @launch kernel=k3_kernel grid=(256,1,1) block=(512,1,1) lds={K3_LDS}")
    for _ in range(E.count("3")):
        a.raw(el)
    a.raw('.amdgcn_target "amdgcn-amd-amdhsa--gfx950"')
    if E:
        kernel_begin(a, "e_kernel")
        a("s_endpgm")
        kernel_desc(a, "e_kernel", 8, 16)
    gen_ln(a)
    gen_k2(a)
    gen_k3(a)
    open(out, "w").write(a.text())


if __name__ == "__main__":
    main(sys.argv[1] if len(sys.argv) > 1 else "cdna_kernels/" + NAME + ".s")
```

```python
from gen2 import Asm, vr, kernel_begin, kernel_desc, make_srd
def gen(order, out, iters=48):
    a = Asm()
    a.raw(f"; @launch grid=(256,1,1) block=(256,1,1) lds=65536")
    a.raw('.amdgcn_target "amdgcn-amd-amdhsa--gfx950"')
    kernel_begin(a, "mb_kernel")
    a("s_load_dwordx2 s[4:5], s[0:1], 0")
    a("s_load_dwordx2 s[6:7], s[0:1], 8")
    a("v_lshrrev_b32 v2, 6, v0")
    a("v_lshlrev_b32 v3, 4, v0")
    a("v_readfirstlane_b32 s3, v2")
    a("s_waitcnt lgkmcnt(0)")
    make_srd(a, 8, 4, 0, 1 << 20)
    make_srd(a, 12, 6, 0, 1 << 20)
    for f in range(24):
        a(f"s_mov_b32 s20, {f * 4096}")
        a(f"buffer_load_dwordx4 {vr(8 + 4 * f, 4)}, v3, s[8:11], s20 offen")
    for i in range(128):
        a(f"v_mov_b32 v{128 + i}, 0")
    a("s_waitcnt vmcnt(0)")
    a("s_barrier")
    a("s_memtime s[60:61]")
    a("s_memrealtime s[62:63]")
    a("s_waitcnt lgkmcnt(0)")
    a(f"s_mov_b32 s30, {iters}")
    a.label("loop")
    for half in range(2):
        A = lambda i: vr(8 + half * 48 + 4 * i, 4)
        B = lambda j: vr(8 + half * 48 + 32 + 4 * j, 4)
        if order == "Bfix4":
            seq = [(i, j) for g in range(2) for j in range(4) for i in range(4 * g, 4 * g + 4)]
        elif order == "Bfix8":
            seq = [(i, j) for j in range(4) for i in range(8)]
        elif order == "Afix4":
            seq = [(i, j) for i in range(8) for j in range(4)]
        elif order == "diag":
            seq = [((k + k // 8) % 8, k % 4) for k in range(32)]
            assert len(set(seq)) == 32
        elif order == "swap4":
            seq = [(i, j) for g in range(2) for j in range(4) for i in range(4 * g, 4 * g + 4)]
        for i, j in seq:
            c = vr(128 + (i * 4 + j) * 4, 4)
            x, y = (A(i), B(j)) if order != "swap4" else (B(j), A(i))
            a(f"v_mfma_f32_16x16x32_bf16 {c}, {x}, {y}, {c}")
    a("s_sub_u32 s30, s30, 1")
    a("s_cmp_lg_u32 s30, 0")
    a("s_cbranch_scc1 loop")
    a("s_memtime s[64:65]")
    a("s_memrealtime s[66:67]")
    a("s_waitcnt lgkmcnt(0)")
    a("s_lshl_b32 s20, s2, 3")
    a("s_add_u32 s20, s20, s3")
    a("s_lshl_b32 s20, s20, 5")
    a("v_mov_b32 v0, 0")
    for j in range(8):
        a(f"v_mov_b32 v{4 + j}, s{60 + j}")
    a("buffer_store_dwordx4 v[4:7], v0, s[12:15], s20 offen")
    a("buffer_store_dwordx4 v[8:11], v0, s[12:15], s20 offen offset:16")
    a("s_endpgm")
    kernel_desc(a, "mb_kernel", 256)
    open(out, "w").write(a.text())
for o in ("Bfix4", "Bfix8", "Afix4", "diag", "swap4"):
    gen(o, f"mbo_{o}.s")
```
